```python
import torch

def _softmax(x, axis=-1):
    return torch.softmax(x, dim=axis)
def _gelu(x):
    return torch.nn.functional.gelu(x, approximate="tanh")
def _silu(x):
    return torch.nn.functional.silu(x)
def _sigmoid(x):
    return torch.sigmoid(x)
def _layernorm(x, axis=-1, eps=1e-5):
    m = x.mean(dim=axis, keepdim=True)
    v = x.var(dim=axis, keepdim=True, unbiased=False)
    return (x - m) / torch.sqrt(v + eps)
def _scatter_add(tgt, idx, src, axis=0):
    return tgt.clone().index_add_(axis, idx, src)
def _segment_sum(src, seg, n):
    out = torch.zeros((n,) + src.shape[1:], dtype=src.dtype)
    return out.index_add_(0, seg, src)
def _pad(x, pw):
    flat = tuple(v for pair in reversed(pw) for v in pair)
    return torch.nn.functional.pad(x, flat)

kernel_name = 'sequential_preLN__linear_attn_block__moe_arch_mod__prompt'

def setup_inputs():

    _w = (lambda a: (lambda t: t.to(torch.bfloat16) if t.is_floating_point() else t)(torch.as_tensor(a)))
    def _A_setup():
        B, S, D = 1, 2048, 1024
        return {
            "x": _w((lambda *s: torch.randn(*s, dtype=torch.bfloat16) * 0.05)(B, S, D)),
            "wqkv": _w((lambda *s: torch.randn(*s, dtype=torch.bfloat16) * 0.05)(D, 3 * D)),
            "wo": _w((lambda *s: torch.randn(*s, dtype=torch.bfloat16) * 0.05)(D, D)),
        }
    _A_in = _A_setup()

    def _B_setup():
        B, S, D, F, C = 1, 2048, 1024, 3584, 2
        return {
            "x": _w((lambda *s: torch.randn(*s, dtype=torch.bfloat16) * 0.05)(B, S, D)),
            "w_r": _w((lambda *s: torch.randn(*s, dtype=torch.bfloat16) * 0.05)(D)),
            "w_gate": _w((lambda *s: torch.randn(*s, dtype=torch.bfloat16) * 0.05)(D, F)),
            "w_up": _w((lambda *s: torch.randn(*s, dtype=torch.bfloat16) * 0.05)(D, F)),
            "w_down": _w((lambda *s: torch.randn(*s, dtype=torch.bfloat16) * 0.05)(F, D)),
        }
    _B_in = _B_setup()

    return {
        "A_x": _A_in["x"],
        "A_wqkv": _A_in["wqkv"],
        "A_wo": _A_in["wo"],
        "B_x": _B_in["x"],
        "B_w_r": _B_in["w_r"],
        "B_w_gate": _B_in["w_gate"],
        "B_w_up": _B_in["w_up"],
        "B_w_down": _B_in["w_down"],
    }

def reference(A_x, A_wqkv, A_wo, B_x, B_w_r, B_w_gate, B_w_up, B_w_down):
    def _A_ref(x, wqkv, wo):
        B, S, D = x.shape
        H = 32; Dh = D // H
        qkv = (lambda x, *d: x.permute(*d))((x @ wqkv).reshape(B, S, 3, H, Dh), 2, 0, 3, 1, 4)
        q, k, v = qkv[0], qkv[1], qkv[2]
        phi = lambda t: torch.where(t > 0, t + 1, torch.exp(t)) + 1e-6
        pq, pk = phi(q), phi(k)
        kv = torch.einsum("bhsd,bhse->bhde", pk, v)
        z = torch.einsum("bhsd->bhd", pk)
        num = torch.einsum("bhqd,bhde->bhqe", pq, kv)
        den = torch.einsum("bhqd,bhd->bhq", pq, z)[..., None] + 1e-6
        o = num / den
        return (lambda x, *d: x.permute(*d))(o, 0, 2, 1, 3).reshape(B, S, D) @ wo

    def _B_ref(x, w_r, w_gate, w_up, w_down):
        B, S, D = x.shape
        C = 2
        r = x @ w_r
        idx = torch.argsort(-r, axis=-1)[:, :C]
        idx_e = (lambda x, n, axis: torch.repeat_interleave(x, n, dim=axis))(idx.reshape(B, C, 1), D, axis=2)
        x_sel = (lambda x, i, axis: torch.take_along_dim(x, i, dim=axis))(x, idx_e, axis=1)
        g = _silu(x_sel @ w_gate)
        u = x_sel @ w_up
        y = (g * u) @ w_down
        r_sel = _sigmoid((lambda x, i, axis: torch.take_along_dim(x, i, dim=axis))(r, idx, axis=1))
        y = y * r_sel.reshape(B, C, 1)
        b_off = (torch.arange(B) * S).reshape(B, 1)
        flat_idx = (idx + b_off).reshape(B * C)
        zero = (x * 0.0).reshape(B * S, D)
        upd = _scatter_add(zero, flat_idx, y.reshape(B * C, D), axis=0)
        return x + upd.reshape(B, S, D)

    x = A_x
    h = x + _A_ref(_layernorm(x, axis=-1), A_wqkv, A_wo)
    h2 = h + _B_ref(_layernorm(h, axis=-1), B_w_r, B_w_gate, B_w_up, B_w_down)
    return h2
```

```python
class Asm:
    def __init__(self):
        self.lines = []
        self.uid = 0
    def __call__(self, s=""):
        for l in s.split("\n"):
            self.lines.append(l)
    def label(self, name):
        self.lines.append(name + ":")
    def newlabel(self, base="L"):
        self.uid += 1
        return f"{base}_{self.uid}"
    def text(self):
        return "\n".join(self.lines) + "\n"

def vr(b, n=1):
    return f"v{b}" if n == 1 else f"v[{b}:{b+n-1}]"
def ar(b, n=1):
    return f"a{b}" if n == 1 else f"a[{b}:{b+n-1}]"
def sr(b, n=1):
    return f"s{b}" if n == 1 else f"s[{b}:{b+n-1}]"

def kernel_begin(A, name):
    A(f".globl {name}\n.p2align 8\n.type {name},@function\n{name}:")

def kernel_desc(A, name, vgpr, agpr=0, sgpr=102):
    acc = max(4, (vgpr + 3) // 4 * 4)
    nfv = acc + agpr if agpr else vgpr
    A(f""".amdhsa_kernel {name}
  .amdhsa_next_free_vgpr {nfv}
  .amdhsa_next_free_sgpr {sgpr}
  .amdhsa_accum_offset {acc}
  .amdhsa_group_segment_fixed_size 0
  .amdhsa_kernarg_size 88
  .amdhsa_user_sgpr_count 2
  .amdhsa_user_sgpr_kernarg_segment_ptr 1
  .amdhsa_system_sgpr_workgroup_id_x 1
  .amdhsa_float_denorm_mode_32 3
.end_amdhsa_kernel""")

def srd(A, d, base_lo, base_hi, nbytes):
    A(f"s_mov_b32 s{d}, s{base_lo}")
    A(f"s_and_b32 s{d+1}, s{base_hi}, 0xffff")
    A(f"s_mov_b32 s{d+2}, {nbytes}")
    A(f"s_mov_b32 s{d+3}, 0x20000")

def interleave(main, fill, start=0, every=1, per=1):
    out = []; fi = 0
    for i, m in enumerate(main):
        out.append(m)
        if i >= start and (i - start) % every == 0:
            for _ in range(per):
                if fi < len(fill):
                    out.append(fill[fi]); fi += 1
    out += fill[fi:]
    return out
```

```python
import re

REG = re.compile(r'^(-|abs\(|\|)?([vas])(?:(\d+)|\[(\d+):(\d+)\])\)?\|?$')
TRANS = ("v_exp_f32", "v_log_f32", "v_rcp_f32", "v_rsq_f32", "v_sqrt_f32", "v_sin_f32", "v_cos_f32", "v_rcp_iflag_f32")

def regs_of(tok):
    tok = tok.strip()
    if tok == "vcc": return {("s", "vcc")}
    if tok in ("vcc_lo", "vcc_hi"): return {("s", "vcc")}
    if tok == "exec": return {("s", "exec")}
    if tok == "m0": return {("s", "m0")}
    m = REG.match(tok)
    if not m: return set()
    k = m.group(2)
    if m.group(3) is not None: lo = hi = int(m.group(3))
    else: lo, hi = int(m.group(4)), int(m.group(5))
    return {(k, i) for i in range(lo, hi + 1)}

def split_ops(s):
    out = []; depth = 0; cur = ""
    for ch in s:
        if ch in "[(": depth += 1
        if ch in "])": depth -= 1
        if ch == "," and depth == 0:
            out.append(cur.strip()); cur = ""
        else: cur += ch
    if cur.strip(): out.append(cur.strip())
    return out

class Ins:
    def __init__(self, text):
        self.text = text
        t = text.split(";")[0].strip()
        self.label = None; self.op = None
        self.kind = "none"
        self.w = set(); self.r = set()
        if not t or t.startswith("."):
            return
        if t.endswith(":"):
            self.label = t[:-1]; return
        parts = t.split(None, 1)
        op = parts[0]; self.op = op
        rest = parts[1] if len(parts) > 1 else ""
        ops = split_ops(rest)
        mods = ""
        if ops:
            sp = ops[-1].split(None, 1)
            ops[-1] = sp[0]
            mods = sp[1] if len(sp) > 1 else ""
        self.ops = ops; self.mods = mods
        R = [regs_of(o) for o in ops]
        base = re.sub(r"_(e32|e64|dpp|sdwa)$", "", op)
        self.base = base
        self.dpp = op.endswith("_dpp") or "quad_perm" in mods or "row_" in mods
        self.sdwa = op.endswith("_sdwa")
        if op.startswith("v_mfma"):
            self.kind = "mfma"
            self.passes = 8 if "32x32" in op else 4
            self.w = R[0]; self.a = R[1] | R[2]; self.c = R[3]; self.r = self.a | self.c
        elif op.startswith("v_"):
            self.kind = "valu"
            nd = 1
            if base in ("v_add_co_u32", "v_sub_co_u32", "v_addc_co_u32", "v_subb_co_u32", "v_div_scale_f32", "v_mad_u64_u32"): nd = 2
            if base.startswith("v_permlane") and base.endswith("swap_b32"):
                self.w = R[0] | R[1]; self.r = R[0] | R[1]
            else:
                for x in R[:nd]: self.w |= x
                for x in R[nd:]: self.r |= x
                if base in ("v_fmac_f32", "v_dot2c_f32_bf16", "v_writelane_b32") or self.dpp or self.sdwa: self.r |= R[0]
            if base.startswith("v_cmpx"): self.w |= {("s", "exec")}
            if base == "v_div_fmas_f32": self.r |= {("s", "vcc")}
            self.trans = base in TRANS
        elif op.startswith("buffer_") or op.startswith("global_") or op.startswith("ds_"):
            self.kind = "ds" if op.startswith("ds_") else "vmem"
            self.lds_dma = " lds" in (" " + mods) or "load_lds" in op
            isload = ("load" in op or "read" in op or "permute" in op or "swizzle" in op) and not self.lds_dma
            if "atomic" in op and "sc0" in mods.split():
                self.w = R[0]
                for x in R: self.r |= x
            elif isload:
                self.w = R[0]
                for x in R[1:]: self.r |= x
            else:
                for x in R: self.r |= x
            if self.lds_dma: self.r |= {("s", "m0")}
            self.wide = ("store" in op and ("x4" in op or "x3" in op))
            if self.wide:
                self.data = R[0] if op.startswith("buffer_") else R[1]
        elif op.startswith("s_"):
            self.kind = "salu"
            if op == "s_nop": self.nop = int(ops[0], 0) + 1
            elif op.startswith("s_cmp") or op.startswith("s_cbranch") or op in ("s_branch", "s_waitcnt", "s_barrier", "s_endpgm", "s_sleep", "s_setprio", "s_bitcmp1_b32", "s_bitcmp0_b32"):
                for x in R: self.r |= x
            else:
                if R: self.w = R[0]
                for x in R[1:]: self.r |= x
                if "saveexec" in op: self.w |= {("s", "exec")}
    @property
    def states(self):
        if self.op is None: return 0
        return getattr(self, "nop", 1)

def vregs(s): return {x for x in s if x[0] in "va"}
def sregs(s): return {x for x in s if x[0] == "s"}

def need(p, c):
    n = 0
    if p.kind == "valu":
        vw = vregs(p.w); sw = sregs(p.w)
        if c.kind == "mfma":
            if vw & c.r: n = max(n, 2)
            if ("s", "exec") in sw: n = max(n, 4)
        if c.kind == "valu":
            if p.trans and not c.trans and (vw & (c.r)): n = max(n, 1)
            if p.trans and c.trans and (vw & c.r): n = max(n, 1)
            if c.dpp and (vw & c.r): n = max(n, 2)
            if c.dpp and ("s", "exec") in sw: n = max(n, 5)
            if c.base.startswith("v_permlane") and (vw & c.r): n = max(n, 2)
            if c.base in ("v_readlane_b32", "v_readfirstlane_b32") and (vw & c.r): n = max(n, 1)
            if c.base in ("v_readlane_b32", "v_readfirstlane_b32", "v_writelane_b32", ) and ("s", "exec") in sw: n = max(n, 4)
            if c.base.startswith("v_permlane") and ("s", "exec") in sw: n = max(n, 4)
            if (sw & sregs(c.r)):
                n = max(n, 4 if c.base in ("v_readlane_b32", "v_writelane_b32", "v_div_fmas_f32") else 2)
            if (p.sdwa or ("op_sel" in p.mods and not p.base.startswith("v_pk_"))) and (vw & (c.r | c.w)): n = max(n, 1)
        if c.kind == "vmem" and (sw & sregs(c.r)): n = max(n, 5)
        if c.kind == "salu" and (sw & sregs(c.r)): n = max(n, 1)
    if p.kind == "mfma":
        big = {4: 8, 8: 12}[p.passes]
        if c.kind == "mfma":
            if p.w & c.a: n = max(n, big)
            if p.w & c.c:
                if not (p.w == c.c and p.passes == c.passes): n = max(n, big - 2)
            elif p.w & c.w: n = max(n, big - 2)
        elif c.kind in ("valu", "vmem", "ds"):
            if p.w & (c.r | c.w): n = max(n, big)
            if c.kind == "valu" and (p.c & c.w): n = max(n, {4: 3, 8: 7}[p.passes])
    if p.kind == "salu" and ("s", "m0") in p.w and c.kind == "vmem" and c.lds_dma: n = max(n, 1)
    if p.kind == "vmem" and p.wide and c.kind in ("valu", "mfma", "ds", "vmem") and (p.data & c.w): n = max(n, 2)
    return n

WINDOW = 21

def fix(text, verbose=False):
    lines = text.split("\n")
    ins = [Ins(l) for l in lines]
    labels = {x.label: i for i, x in enumerate(ins) if x.label}
    out = []
    inserted = 0
    def deficit(hist, c):
        d = 0; dist = 0
        for p in reversed(hist):
            if p.op is None: continue
            if dist >= WINDOW: break
            k = need(p, c)
            if k > dist: d = max(d, k - dist)
            dist += p.states
            if p.op in ("s_endpgm", "s_branch"): break
        return d
    for i, c in enumerate(ins):
        if c.op is not None:
            d = deficit(out, c)
            if c.op.startswith("s_cbranch") or c.op == "s_branch":
                tgt = labels.get(c.ops[0])
                if tgt is not None:
                    hist = out[-60:] + [c]
                    if c.op == "s_branch":
                        hist = out[-60:] + [Ins("s_nop 0")]
                    dist = 0; j = tgt; extra = 0
                    sim = list(hist)
                    while j < len(ins) and dist < WINDOW:
                        t = ins[j]
                        if t.op is not None:
                            dd = 0; ds = dist
                            for p in reversed(hist):
                                if p.op is None: continue
                                if ds >= WINDOW: break
                                k = need(p, t)
                                if k > ds: dd = max(dd, k - ds)
                                ds += p.states
                            extra = max(extra, dd)
                            dist += t.states
                            if t.op in ("s_endpgm", "s_branch"): break
                        j += 1
                    d = max(d, extra)
            while d > 0:
                k = min(d, 16)
                out.append(Ins(f"s_nop {k-1}  ; hz"))
                inserted += 1
                if verbose: print("hazard nop", k, "before", c.text)
                d -= k
        out.append(c)
    return "\n".join(x.text for x in out), inserted
```

```python
import sys, os
sys.path.insert(0, os.path.dirname(os.path.abspath(__file__)))
from asmlib import *
import hazard

NAME = "sequential_preLN__linear_attn_block__moe_arch_mod__prompt"

WS_EPOCH = 0
WS_IDR = 0x1000
WS_RS = 0x2000
WS_CS = 0x10000
WS_KV = 0x80000
KVS = 4352
WS_O = 0x200000
WS_ST = 0x600000
WS_REC = 0x680000
WS_CSEG = 0x690000
WS_YP = 0x700000
WS_DBG = 0x1000000

SLOT = 40960
L_XT = 0
L_EX = 16384
L_KVF = 24576
L_WO = 28672
L_ST = 159744
L_NM, L_RS, L_CSUM = L_ST, L_ST + 512, L_ST + 1024
L_FAST = L_ST + 1792
L_ZF = L_ST + 1856
L_TOP = L_ST + 2048
L_PICK = L_ST + 2112
L_RED = L_ST + 2304
L_FIN = L_ST + 3328
L_ZEX = L_ST + 3840
L_OUT = 32768
L_MOE = 65536
L_ST2 = 49152

SENT = -1
LOG2E = 1.4426950408889634

def f2u(x):
    import struct
    return struct.unpack("<I", struct.pack("<f", x))[0]

class VM:
    def __init__(self): self.n = 0; self.tags = {}
    def issue(self, tag=None, k=1):
        self.n += k
        if tag: self.tags[tag] = self.n
    def wait(self, tag):
        c = self.n - self.tags[tag]
        assert c <= 63, (tag, c)
        return f"s_waitcnt vmcnt({c})"

def gen(stamps=False, moe_split=(3, 5), name=NAME + "_kernel", force_slow=False, SPIN=1 << 16, odepth=6):
    A = Asm()
    SX, SW, SWS, SWO, SOUT, SG, SU, SD, SWR = 4, 8, 12, 16, 20, 24, 28, 32, 36
    sWave, sRole, sXc, sJ, sG, sM, sWm, sWh, sTag, sFast = 60, 61, 62, 63, 64, 65, 66, 67, 68, 69
    sT, sT1, sT2, sT3 = 70, 71, 72, 73
    sKA, sKB, sM0A, sM0B, sSpin, sMoe = 74, 75, 76, 77, 78, 79
    sEps, sOne = 80, 82
    sWsum, sK1, sK2, sB0, sB1, sLog = 84, 85, 86, 87, 88, 90
    sMask = 92
    sC0, sC1 = 94, 95
    SREG = list(range(40, 60, 2)) + [96, 98, 100]
    WSR = f"s[{SWS}:{SWS+3}]"
    out_of_line = []
    stamp_n = {"C": 0, "L": 0}
    def stamp(role):
        if stamps:
            i = stamp_n[role]; stamp_n[role] += 1
            A(f"s_memrealtime s[{SREG[i]}:{SREG[i]+1}]")
    def dump_stamps(role):
        if not stamps: return
        A("s_mov_b64 exec, 1\ns_waitcnt lgkmcnt(0)")
        A(f"s_lshl_b32 s{sT}, s2, 3\ns_lshl_b32 s{sT1}, s{sRole}, 2\ns_add_u32 s{sT}, s{sT}, s{sT1}\ns_add_u32 s{sT}, s{sT}, s{sWave}\ns_lshl_b32 s{sT}, s{sT}, 6\ns_add_u32 s{sT}, s{sT}, {WS_DBG}")
        A("v_mov_b32 v2, 0")
        for i in range(stamp_n[role]):
            A(f"v_mov_b32 v3, s{SREG[i]}\nbuffer_store_dword v3, v2, {WSR}, s{sT} offen offset:{4*i}")
        A(f"v_mov_b32 v3, s{sSpin}\nbuffer_store_dword v3, v2, {WSR}, s{sT} offen offset:60")
    def retry(check, reload, lname):
        A(f"{lname}_chk:")
        for x in check: A(x)
        A(f"s_cbranch_vccnz {lname}_rt\n{lname}_ok:")
        out_of_line.append(f"{lname}_rt:\ns_add_u32 s{sSpin}, s{sSpin}, 1\ns_cmp_gt_u32 s{sSpin}, {SPIN}\ns_cbranch_scc1 {lname}_ok\n" +
                           "\n".join(reload) + f"\ns_waitcnt vmcnt(0)\ns_branch {lname}_chk")
    def fast_slow(fn, lname):
        A(f"s_cmp_eq_u32 s{sFast}, 0\ns_cbranch_scc1 {lname}_s")
        for x in fn(""): A(x)
        A(f"{lname}_d:")
        out_of_line.append(f"{lname}_s:\n" + "\n".join(fn(" sc1")) + f"\ns_branch {lname}_d")

    hdr = open(os.path.join(os.path.dirname(os.path.abspath(__file__)), "..", NAME + ".s.ref")).read().split("\n")
    for l in hdr:
        if l.startswith("; @launch"): break
        A(l)
    A("; @launch grid=(256,1,1) block=(512,1,1) lds=163840")
    A('.amdgcn_target "amdgcn-amd-amdhsa--gfx950"\n.text')
    kernel_begin(A, name)
    A("s_cmp_ge_u32 s2, 256\ns_cbranch_scc1 L_end")
    A("s_load_dwordx16 s[40:55], s[0:1], 0\ns_load_dwordx2 s[56:57], s[0:1], 64\ns_load_dwordx2 s[58:59], s[0:1], 80")
    A(f"v_lshrrev_b32 v2, 6, v0\nv_and_b32 v1, 63, v0\nv_readfirstlane_b32 s{sWave}, v2")
    A(f"s_and_b32 s{sXc}, s2, 7\ns_lshr_b32 s{sJ}, s2, 3\ns_lshl_b32 s{sG}, s{sXc}, 1\ns_and_b32 s{sT}, s{sJ}, 1\ns_add_u32 s{sG}, s{sG}, s{sT}\ns_lshr_b32 s{sM}, s{sJ}, 1")
    A(f"s_mul_i32 s{sMoe}, s{sXc}, 28\ns_add_u32 s{sMoe}, s{sMoe}, s{sJ}")
    A(f"s_mov_b32 s{sSpin}, 0")
    A(f"s_lshr_b32 s{sRole}, s{sWave}, 2\ns_and_b32 s{sWave}, s{sWave}, 3")
    A(f"s_lshr_b32 s{sWm}, s{sWave}, 1\ns_and_b32 s{sWh}, s{sWave}, 1")
    A(f"v_lshlrev_b32 v16, 4, v1")
    A(f"s_cmp_eq_u32 s{sRole}, 0\ns_cbranch_scc1 L_compute")

    vm = VM()
    vAld, vBld = 8, 12
    vL16 = 18
    A(f"v_mov_b32 v{vL16}, v16")
    A(f"s_lshl_b32 s{sT}, s{sM}, 2\ns_add_u32 s{sT}, s{sT}, s{sWave}\ns_lshl_b32 s{sT}, s{sT}, 16")
    A(f"v_lshrrev_b32 v2, 3, v1\nv_lshlrev_b32 v5, 11, v2\nv_add_u32 v5, s{sT}, v5")
    A(f"v_lshrrev_b32 v3, 4, v1\nv_and_b32 v4, 7, v1\nv_xor_b32 v3, v3, v4")
    for j in range(4):
        A(f"v_xor_b32 v6, {4*(j&1)}, v3\nv_lshl_add_u32 v6, v6, 4, v5\nv_add_u32 v{vAld+j}, {j*8*2048 - 1024*j}, v6")
    A(f"s_lshl_b32 s{sT}, s{sWave}, 4\nv_add_u32 v5, s{sT}, v2\nv_mul_u32_u24 v5, 6144, v5\ns_lshl_b32 s{sT}, s{sG}, 7\nv_add_u32 v5, s{sT}, v5")
    A(f"v_bfe_u32 v3, v1, 4, 1\nv_lshlrev_b32 v3, 1, v3\nv_xor_b32 v3, v3, v4")
    for p in range(3):
        for u in range(2):
            idx = p*2 + u
            A(f"v_xor_b32 v6, {4*u}, v3\nv_lshl_add_u32 v6, v6, 4, v5\nv_add_u32 v{vBld+idx}, {p*2048 + u*8*6144 - 1024*(idx&3)}, v6")
    A(f"s_lshl_b32 s{sM0A}, s{sWave}, 12\ns_mul_i32 s{sM0B}, s{sWave}, 6144\ns_add_u32 s{sM0B}, s{sM0B}, 16384")
    A(f"s_mul_i32 s{sKB}, s{sM}, {64*6144}\ns_lshl_b32 s{sKA}, s{sM}, 7")
    A("s_waitcnt lgkmcnt(0)")
    srd(A, SX, 40, 41, 2048*1024*2)
    srd(A, SW, 42, 43, 1024*3072*2)
    def dma(slot, st):
        L = []
        for j in range(4):
            pre = f"s_add_u32 m0, s{sM0A}, {slot*SLOT}\n" if j == 0 else ""
            L.append(pre + f"buffer_load_dwordx4 v{vAld+j}, s[{SX}:{SX+3}], s{sKA} offen offset:{1024*j} lds")
        for idx in range(6):
            pre = f"s_add_u32 m0, s{sM0B}, {slot*SLOT + (idx//4)*4096}\n" if idx % 4 == 0 else ""
            post = f"\ns_add_u32 s{sKA}, s{sKA}, 128\ns_add_u32 s{sKB}, s{sKB}, {64*6144}\ns_and_b32 s{sKA}, s{sKA}, 2047\ns_cselect_b32 s{sKB}, s{sKB}, 0" if idx == 5 else ""
            L.append(pre + f"buffer_load_dwordx4 v{vBld+idx}, s[{SW}:{SW+3}], s{sKB} offen offset:{1024*(idx&3)} lds" + post)
        return L
    def emit_dma(L, tag):
        for x in L: A(x)
        vm.issue(tag, len(L))
    RAMP = 4
    emit_dma(dma(0, 0), "st0")
    d1 = dma(1, 1)
    emit_dma(d1[:RAMP], None)
    srd(A, SWS, 58, 59, 256 << 20)
    srd(A, SWO, 44, 45, 1024*1024*2)
    srd(A, SOUT, 56, 57, 2048*1024*2)
    srd(A, SG, 50, 51, 1024*3584*2)
    srd(A, SU, 52, 53, 1024*3584*2)
    srd(A, SD, 54, 55, 3584*1024*2)
    stamp("L")
    A(vm.wait("st0") + "\ns_barrier")
    emit_dma(d1[RAMP:], "st1")
    emit_dma(dma(2, 2), "st2")
    A(vm.wait("st1") + "\ns_barrier")
    vRow = 20
    vU = 36
    def rs_issue():
        A(f"s_lshl_b32 s{sT}, s{sM}, 7\ns_lshl_b32 s{sT1}, s{sG}, 3\ns_add_u32 s{sT}, s{sT}, s{sT1}\ns_lshl_b32 s{sT1}, s{sWave}, 1\ns_add_u32 s{sB0}, s{sT}, s{sT1}\ns_lshl_b32 s{sT}, s{sB0}, 11")
        A(f"v_mov_b32 v2, 0\nbuffer_load_dword v19, v2, {WSR}, 0 offen sc1")
        for q in range(4):
            A(f"buffer_load_dwordx4 {vr(vRow+4*q, 4)}, v{vL16}, s[{SX}:{SX+3}], s{sT} offen offset:{1024*q}")
        vm.issue("rs", 5)
    def wave_sum2(a, b):
        for k in (1, 2, 4, 8):
            A(f"v_add_f32_dpp v{a}, v{a}, v{a} row_ror:{k} row_mask:0xf bank_mask:0xf\nv_add_f32_dpp v{b}, v{b}, v{b} row_ror:{k} row_mask:0xf bank_mask:0xf")
        for sw in ("16", "32"):
            A(f"v_mov_b32 v6, v{a}\nv_mov_b32 v7, v{b}\nv_permlane{sw}_swap_b32 v{a}, v6\nv_permlane{sw}_swap_b32 v{b}, v7\nv_add_f32 v{a}, v{a}, v6\nv_add_f32 v{b}, v{b}, v7")
    def rs_part1():
        A(vm.wait("rs"))
        A(f"v_readfirstlane_b32 s{sTag}, v19")
        for q in range(16):
            A(f"v_lshlrev_b32 v{vU+2*q}, 16, v{vRow+q}\nv_and_b32 v{vU+2*q+1}, 0xffff0000, v{vRow+q}")
        A(f"s_add_u32 s{sTag}, s{sTag}, 1")
        for i in range(2):
            b = vU + 16*i; t = vRow + 8*i
            for q in range(4): A(f"v_pk_add_f32 {vr(t+2*q, 2)}, {vr(b+4*q, 2)}, {vr(b+4*q+2, 2)}")
            for q in range(2): A(f"v_pk_add_f32 {vr(t+4*q, 2)}, {vr(t+4*q, 2)}, {vr(t+4*q+2, 2)}")
            A(f"v_pk_add_f32 {vr(t, 2)}, {vr(t, 2)}, {vr(t+4, 2)}")
            A(f"v_add_f32 v{2+2*i}, v{t}, v{t+1}")
        wave_sum2(2, 4)
        A(f"v_mul_f32 v2, {hex(f2u(-1.0/1024))}, v2\nv_mul_f32 v4, {hex(f2u(-1.0/1024))}, v4")
    def rs_part2():
        for i in range(2):
            b = vU + 16*i; t = vRow + 8*i
            for q in range(8): A(f"v_pk_add_f32 {vr(b+2*q, 2)}, {vr(b+2*q, 2)}, {vr(2+2*i, 2)} op_sel_hi:[1,0]")
            for q in range(2): A(f"v_pk_mul_f32 {vr(t+2*q, 2)}, {vr(b+2*q, 2)}, {vr(b+2*q, 2)}")
            for q in range(2, 8): A(f"v_pk_fma_f32 {vr(t+2*(q&1), 2)}, {vr(b+2*q, 2)}, {vr(b+2*q, 2)}, {vr(t+2*(q&1), 2)}")
            A(f"v_pk_add_f32 {vr(t, 2)}, {vr(t, 2)}, {vr(t+2, 2)}")
            A(f"v_add_f32 v{3+2*i}, v{t}, v{t+1}")
        wave_sum2(3, 5)
        A(f"v_mov_b32 v6, {hex(f2u(1e-5))}")
        A(f"v_fmac_f32 v6, {hex(f2u(1.0/1024))}, v3\nv_rsq_f32 v3, v6\nv_mov_b32 v6, {hex(f2u(1e-5))}\nv_fmac_f32 v6, {hex(f2u(1.0/1024))}, v5\nv_rsq_f32 v5, v6")
        A(f"v_cmp_eq_u32 vcc, 1, v1\nv_cndmask_b32 v20, v2, v4, vcc\nv_cndmask_b32 v21, v3, v5, vcc\nv_mov_b32 v22, 0\nv_mov_b32 v23, s{sTag}")
        A(f"s_lshl_b32 s{sT}, s{sB0}, 4\ns_add_u32 s{sT}, s{sT}, {WS_RS}\ns_mov_b64 exec, 3")
        A(f"buffer_store_dwordx4 v[20:23], v{vL16}, {WSR}, s{sT} offen sc1\ns_mov_b64 exec, -1")
        vm.issue()
    def id_publish():
        A(f"s_getreg_b32 s{sT1}, hwreg(HW_REG_XCC_ID, 0, 4)\nv_mov_b32 v24, s{sT1}\nv_mov_b32 v25, 0\nv_mov_b32 v26, 0\nv_mov_b32 v27, s{sTag}")
        A(f"s_lshl_b32 s{sT}, s{sG}, 4\ns_add_u32 s{sT}, s{sT}, s{sM}\ns_lshl_b32 s{sT}, s{sT}, 4\ns_add_u32 s{sT}, s{sT}, {WS_IDR}")
        A(f"s_mov_b64 exec, 1\nbuffer_store_dwordx4 v[24:27], v{vL16}, {WSR}, s{sT} offen sc1\ns_mov_b64 exec, -1")
        vm.issue()
    vCS, vRG, vID = 20, 36, 40
    def eg_loads():
        L = []
        for j in range(4):
            L.append(f"s_add_u32 s{sT}, s{sB0}, {j*4096}\nbuffer_load_dwordx4 {vr(vCS+4*j, 4)}, v44, {WSR}, s{sT} offen sc1")
        L.append(f"buffer_load_dwordx4 {vr(vRG, 4)}, v45, {WSR}, s{sB1} offen sc1")
        L.append(f"buffer_load_dwordx4 {vr(vID, 4)}, v46, {WSR}, 0 offen offset:0 sc1")
        return L
    def eg_issue():
        A(f"v_lshrrev_b32 v2, 4, v1\nv_and_b32 v3, 15, v1\nv_lshlrev_b32 v44, 10, v2\nv_lshl_add_u32 v44, v3, 4, v44\ns_lshl_b32 s{sT}, s{sWave}, 8\nv_add_u32 v44, s{sT}, v44")
        A(f"s_lshl_b32 s{sB0}, s{sG}, 14\ns_add_u32 s{sB0}, s{sB0}, {WS_CS}")
        A(f"v_and_b32 v45, 31, v1\nv_lshlrev_b32 v45, 4, v45\ns_lshl_b32 s{sB1}, s{sM}, 11\ns_lshl_b32 s{sT}, s{sWave}, 9\ns_add_u32 s{sB1}, s{sB1}, s{sT}\ns_add_u32 s{sB1}, s{sB1}, {WS_RS}")
        A(f"s_lshl_b32 s{sT}, s{sG}, 8\ns_add_u32 s{sT}, s{sT}, {WS_IDR}\nv_lshlrev_b32 v4, 4, v3\nv_add_u32 v4, s{sT}, v4")
        A(f"s_lshl_b32 s{sT}, s{sG}, 4\ns_add_u32 s{sT}, s{sT}, {WS_IDR}\nv_lshlrev_b32 v5, 8, v3\nv_add_u32 v5, s{sT}, v5")
        A(f"v_and_b32 v6, 1, v2\nv_cmp_eq_u32 vcc, 1, v6\nv_cndmask_b32 v46, v4, v5, vcc")
        for x in eg_loads(): A(x)
        vm.issue("eg", 6)
    def eg_finish():
        A(vm.wait("eg"))
        chk = [f"v_xor_b32 v2, s{sTag}, v{vCS+3}", f"v_xor_b32 v3, s{sTag}, v{vCS+7}", f"v_xor_b32 v4, s{sTag}, v{vCS+11}",
               f"v_or3_b32 v2, v2, v3, v4", f"v_xor_b32 v3, s{sTag}, v{vCS+15}", f"v_xor_b32 v4, s{sTag}, v{vRG+3}",
               f"v_or3_b32 v2, v2, v3, v4", f"v_xor_b32 v3, s{sTag}, v{vID+3}", f"v_or_b32 v2, v2, v3", "v_cmp_ne_u32 vcc, 0, v2"]
        retry(chk, eg_loads(), "L_eg")
        for e in range(3):
            A(f"v_add_f32 v{vCS+e}, v{vCS+e}, v{vCS+4+e}\nv_add_f32 v{vCS+8+e}, v{vCS+8+e}, v{vCS+12+e}")
        for e in range(3): A(f"v_add_f32 v{vCS+e}, v{vCS+e}, v{vCS+8+e}")
        for sw in ("16", "32"):
            for e in range(3): A(f"v_mov_b32 v{vCS+4+e}, v{vCS+e}")
            for e in range(3): A(f"v_permlane{sw}_swap_b32 v{vCS+e}, v{vCS+4+e}")
            for e in range(3): A(f"v_add_f32 v{vCS+e}, v{vCS+e}, v{vCS+4+e}")
        A(f"v_and_b32 v3, 15, v1\nv_lshlrev_b32 v3, 2, v3\ns_lshl_b32 s{sT}, s{sWave}, 6\ns_add_u32 s{sT}, s{sT}, {L_CSUM}\nv_add_u32 v3, s{sT}, v3")
        for e in range(3): A(f"ds_write_b32 v3, v{vCS+e} offset:{256*e}")
        A(f"v_lshrrev_b32 v4, 2, v45\ns_lshl_b32 s{sT}, s{sWave}, 7\ns_add_u32 s{sT}, s{sT}, {L_NM}\nv_add_u32 v4, s{sT}, v4")
        A(f"ds_write_b32 v4, v{vRG}\nds_write_b32 v4, v{vRG+1} offset:512")
        A(f"s_getreg_b32 s{sT1}, hwreg(HW_REG_XCC_ID, 0, 4)\nv_cmp_ne_u32 vcc, s{sT1}, v{vID}\ns_and_b32 s{sT}, vcc_lo, 0xffff\ns_cselect_b32 s{sFast}, 0, {0 if force_slow else 1}")
        A(f"v_mov_b32 v5, s{sFast}\nv_mov_b32 v6, {L_FAST}\nds_write_b32 v6, v5\ns_waitcnt lgkmcnt(0)")
    vWo = 48
    def wo_addr():
        A(f"v_lshrrev_b32 v2, 3, v1\nv_lshlrev_b32 v2, 11, v2\nv_bfe_u32 v3, v1, 4, 2\nv_lshlrev_b32 v3, 1, v3\nv_and_b32 v4, 7, v1\nv_xor_b32 v3, v3, v4\nv_lshl_add_u32 v2, v3, 4, v2")
        A(f"s_lshl_b32 s{sT}, s{sM}, 7\nv_add_u32 v{vWo}, s{sT}, v2")
        for j in range(1, 4): A(f"v_add_u32 v{vWo+j}, {j*(16384-1024)}, v{vWo}")
    def wo_piece(q0, n, tag):
        A(f"s_mul_i32 s{sT}, s{sWave}, {n}\ns_add_u32 s{sT}, s{sT}, {q0}\ns_lshl_b32 s{sT1}, s{sT}, 14\ns_lshl_b32 s{sT}, s{sT}, 10\ns_add_u32 m0, s{sT}, {L_WO}")
        for i in range(n):
            if i and i % 4 == 0: A(f"s_add_u32 m0, m0, 4096\ns_add_u32 s{sT1}, s{sT1}, 65536")
            A(f"buffer_load_dwordx4 v{vWo+(i&3)}, s[{SWO}:{SWO+3}], s{sT1} offen offset:{1024*(i&3)} lds")
        vm.issue(tag, n)
    def x_tile():
        A(f"s_sub_i32 s{sT}, s{sG}, s{sM}\ns_lshl_b32 s{sT}, s{sT}, 18")
        for j in range(4): A(f"v_add_u32 v{vAld+j}, s{sT}, v{vAld+j}")
        A(f"s_lshl_b32 s{sT}, s{sM}, 7\ns_mov_b32 m0, s{sM0A}")
        for j in range(4): A(f"buffer_load_dwordx4 v{vAld+j}, s[{SX}:{SX+3}], s{sT} offen offset:{1024*j} lds")
        vm.issue("xt", 4)
    vGU, vWD, vWDr, vWDf = 52, 53, 84, 116
    sGU = sKA
    moe_list = [("gu", ks, 0, mat) for ks in range(8) for mat in range(2)]
    for a in range(2):
        for jj in range(4): moe_list.append(("wd", a, jj, 0))
    moe_pos = [0]
    def moe_addr():
        A(f"v_bfe_u32 v2, v1, 3, 2\nv_lshlrev_b32 v2, 3, v2\nv_lshrrev_b32 v3, 5, v1\nv_lshl_add_u32 v2, v3, 2, v2\nv_bfe_u32 v3, v1, 1, 2\nv_add_u32 v2, v2, v3")
        A(f"v_mul_u32_u24 v{vGU}, 7168, v2\nv_and_b32 v3, 1, v1\nv_lshl_add_u32 v{vGU}, v3, 4, v{vGU}")
        A(f"v_lshrrev_b32 v2, 4, v1\nv_and_b32 v3, 15, v1")
        A(f"v_lshlrev_b32 v{vWD}, 13, v2\nv_lshl_add_u32 v{vWD}, v3, 4, v{vWD}\nv_add_u32 v{vWD+1}, 4096, v{vWD}")
        A(f"s_mul_i32 s{sGU}, s{sWave}, {256*7168}\ns_lshl_b32 s{sT}, s{sMoe}, 5\ns_add_u32 s{sGU}, s{sGU}, s{sT}")
        A(f"s_lshl_b32 s{sKB}, s{sMoe}, 15\ns_lshl_b32 s{sT}, s{sWave}, 9\ns_add_u32 s{sKB}, s{sKB}, s{sT}")
    def moe_loads(n, lname):
        if n <= 0: return
        A(f"s_cmp_ge_u32 s{sJ}, 28\ns_cbranch_scc1 {lname}")
        for c in range(n):
            kind, x, y, mat = moe_list[moe_pos[0]]; moe_pos[0] += 1
            if kind == "gu":
                srdx = SU if mat else SG
                A(f"buffer_load_dwordx4 {ar(mat*32 + x*4, 4)}, v{vGU}, s[{srdx}:{srdx+3}], s{sGU} offen")
                if mat: A(f"s_add_u32 s{sGU}, s{sGU}, {7168*32}")
            else:
                A(f"buffer_load_dwordx4 {vr(vWDr + x*16 + y*4, 4)}, v{vWD + (y >> 1)}, s[{SD}:{SD+3}], s{sKB} offen offset:{(y & 1)*2048 + x*256}")
        A(f"{lname}:")
        vm.issue(None, n)

    for st in range(1, 15):
        if st + 2 < 16: emit_dma(dma((st - 1) % 3, st + 2), f"st{st+2}")
        if st == 1: rs_issue()
        if st == 3: rs_part1()
        if st == 4: rs_part2()
        if st == 5: id_publish()
        if st == 8: wo_addr()
        if st == 10: eg_issue()
        if st == 12: eg_finish()
        if st == 14:
            wo_piece(92, 9, None); wo_piece(12, 10, None)
        A(vm.wait(f"st{st+1}") + "\ns_barrier")
    wo_piece(52, 10, None)
    moe_addr()
    A("s_barrier")
    stamp("L")
    wo_piece(0, 3, None)
    x_tile()
    vSel = 76
    A(f"v_lshrrev_b32 v2, 4, v1\nv_bfe_u32 v3, v1, 2, 2\nv_and_b32 v4, 1, v1\nv_lshlrev_b32 v4, 4, v4\nv_mov_b32 v5, 0x3f80\nv_lshlrev_b32 v4, v4, v5")
    A(f"v_cmp_eq_u32 vcc, v2, v3\nv_cndmask_b32 v4, 0, v4, vcc\nv_and_b32 v5, 2, v1\nv_cmp_eq_u32 vcc, 0, v5")
    A(f"v_cndmask_b32 v{vSel+2}, 0, v4, vcc\nv_cndmask_b32 v{vSel+3}, v4, 0, vcc" if False else
      f"v_cndmask_b32 v{vSel+2}, 0, v4, vcc\nv_cndmask_b32_e64 v{vSel+3}, v4, 0, vcc")
    A(f"v_mov_b32 v{vSel}, 0\nv_mov_b32 v{vSel+1}, 0\nv_mov_b32 v{vSel+4}, 0\nv_mov_b32 v{vSel+5}, 0")
    moe_loads(moe_split[0], "L_moeA")
    vP, vZ, vZa = 84, 148, 55
    assert moe_split[0] <= 16
    A(f"v_and_b32 v3, 15, v1\nv_mul_u32_u24 v{vZa}, {KVS}, v3\nv_lshrrev_b32 v2, 4, v1\nv_lshl_add_u32 v{vZa}, v2, 5, v{vZa}")
    A(f"s_mul_i32 s{sB0}, s{sG}, {16*KVS}\ns_add_u32 s{sB0}, s{sB0}, {WS_KV}")
    A(f"s_lshl_b32 s{sT}, s{sWm}, 7\ns_lshl_b32 s{sT1}, s{sWh}, 4\ns_add_u32 s{sB1}, s{sT}, s{sT1}\ns_add_u32 s{sB1}, s{sB1}, s{sB0}\ns_add_u32 s{sB1}, s{sB1}, 4096")
    A(f"s_lshl_b32 s{sT}, s{sWave}, 10\ns_add_u32 s{sB0}, s{sB0}, s{sT}")
    def kv_load(i):
        return [f"s_add_u32 s{sT}, s{sM}, {i+1}\ns_and_b32 s{sT}, s{sT}, 15\ns_mul_i32 s{sT}, s{sT}, {KVS}\ns_add_u32 s{sT}, s{sT}, s{sB0}",
                f"buffer_load_dwordx4 {vr(vP+4*i, 4)}, v{vL16}, {WSR}, s{sT} offen sc1"]
    z_load = [f"buffer_load_dwordx4 {vr(vZ, 4)}, v{vZa}, {WSR}, s{sB1} offen sc1"]
    A("s_barrier")
    stamp("L")
    for i in range(16):
        for x in kv_load(i): A(x)
        vm.issue(f"kv{i}")
    for x in z_load: A(x)
    vm.issue("z")
    vD = 68
    for c in range(4):
        A(vm.wait(f"kv{4*c+3}"))
        r = [vP + 16*c + 4*i for i in range(4)]
        retry([f"v_max3_u32 v2, v{r[0]}, v{r[1]}, v{r[2]}", f"v_max_u32 v2, v2, v{r[3]}", f"v_cmp_eq_u32 vcc, -1, v2"],
              sum([kv_load(4*c+i) for i in range(4)], []), f"L_kv{c}")
        for i in range(4):
            first = c == 0 and i == 0
            A(f"v_mfma_f32_16x16x32_bf16 {vr(vD, 4)}, {vr(vSel+2, 4)}, {vr(r[i], 4)}, {0 if first else vr(vD, 4)}")
            A(f"v_mfma_f32_16x16x32_bf16 {vr(vD+4, 4)}, {vr(vSel, 4)}, {vr(r[i], 4)}, {0 if first else vr(vD+4, 4)}")
    A(vm.wait("z"))
    retry([f"v_cmp_eq_u32 vcc, -1, v{vZ}"], z_load, "L_z")
    for k in (1, 2, 4, 8):
        for e in range(4): A(f"v_add_f32_dpp v{vZ+e}, v{vZ+e}, v{vZ+e} row_ror:{k} row_mask:0xf bank_mask:0xf")
    A(f"v_cvt_pk_bf16_f32 v{vZ}, v{vZ}, v{vZ+1}\nv_cvt_pk_bf16_f32 v{vZ+1}, v{vZ+2}, v{vZ+3}")
    A(f"s_lshl_b32 s{sT}, s{sWm}, 6\ns_lshl_b32 s{sT1}, s{sWh}, 3\ns_add_u32 s{sT}, s{sT}, s{sT1}\ns_add_u32 s{sT}, s{sT}, {L_ZF}\nv_lshrrev_b32 v2, 4, v1\nv_lshlrev_b32 v2, 4, v2\nv_add_u32 v2, s{sT}, v2")
    A(f"ds_write_b64 v2, {vr(vZ, 2)}")
    for e in range(4): A(f"v_cvt_pk_bf16_f32 v{vD+e}, v{vD+2*e}, v{vD+2*e+1}")
    A(f"s_lshl_b32 s{sT}, s{sWave}, 10\ns_add_u32 s{sT}, s{sT}, {L_KVF}\nv_add_u32 v3, s{sT}, v{vL16}\nds_write_b128 v3, {vr(vD, 4)}")
    A("s_waitcnt lgkmcnt(0)\ns_barrier")
    stamp("L")
    moe_loads(moe_split[1], "L_moeB")
    A("s_barrier")
    stamp("L")
    moe_loads(24 - moe_pos[0], "L_moeC")
    A("s_barrier")
    vCg = 68
    vOne = 76
    A(f"s_cmp_ge_u32 s{sJ}, 28\ns_cbranch_scc1 L_noprep")
    A(f"s_lshl_b32 s{sT}, s{sWave}, 14\ns_add_u32 s{sT}, s{sT}, {L_MOE}\nv_add_u32 v2, s{sT}, v{vL16}\nv_lshlrev_b32 v3, 3, v1\nv_add_u32 v3, s{sT}, v3")
    A(f"s_mov_b32 s{sC0}, 0x05040100\ns_mov_b32 s{sC1}, 0x07060302")
    for e in range(4): A(f"v_mov_b32 v{vOne+e}, 0x3f803f80")
    A("s_waitcnt vmcnt(0)")
    for q in range(16): A(f"ds_write_b128 v2, {ar(4*q, 4)} offset:{1024*q}")
    A("s_waitcnt lgkmcnt(0)")
    for q in range(16):
        for t in range(2): A(f"ds_read_b64_tr_b16 {ar(4*q + 2*t, 2)}, v3 offset:{1024*q + 512*t}")
    for a in range(2):
        for e in range(8):
            for h in range(2):
                A(f"v_perm_b32 v{vWDf + a*16 + e*2 + h}, v{vWDr + a*16 + (2*h+1)*4 + (e >> 1)}, v{vWDr + a*16 + 2*h*4 + (e >> 1)}, s{sC1 if e & 1 else sC0}")
    A("s_waitcnt lgkmcnt(0)")
    for ks in range(8):
        for mat in range(2):
            A(f"v_mfma_f32_16x16x32_bf16 {vr(vCg+4*mat, 4)}, {ar(mat*32+ks*4, 4)}, {vr(vOne, 4)}, {0 if ks == 0 else vr(vCg+4*mat, 4)}")
    A("L_noprep:")
    A(f"v_and_b32 v2, 1, v1\nv_lshlrev_b32 v56, 4, v2\nv_add_u32 v56, {L_PICK}, v56")
    A(f"v_lshrrev_b32 v3, 4, v1\nv_lshlrev_b32 v57, 4, v3\ns_lshl_b32 s{sT}, s{sWave}, 9\ns_add_u32 s{sT}, s{sT}, {WS_CSEG}\nv_add_u32 v57, s{sT}, v57")
    A(f"v_lshlrev_b32 v58, 6, v2\nv_lshl_add_u32 v58, v3, 4, v58\nv_add_u32 v58, {L_RED}, v58")
    A(f"s_lshl_b32 s{sT}, s{sWave}, 8\nv_add_u32 v59, s{sT}, v58")
    A(f"v_bfe_u32 v60, v1, 1, 3")
    A("s_barrier")
    stamp("L")
    vPk = 20
    vX = 24
    A(f"ds_read_b128 {vr(vPk, 4)}, v56")
    A(f"s_mov_b32 s{sMask}, 0x00030003\ns_mov_b32 s{sMask+1}, 0x00030003")
    vH, vYa, vN = 61, 62, 63
    A(f"s_sub_u32 s{sB1}, s{sJ}, 24\ns_lshl_b32 s{sT}, s{sXc}, 3\ns_add_u32 s{sB1}, s{sB1}, s{sT}")
    A(f"s_waitcnt lgkmcnt(0)")
    A(f"s_cmp_ge_u32 s{sJ}, 28\ns_cbranch_scc1 L_nomoe")
    A(f"v_lshl_add_u32 v57, v{vPk+3}, 11, v57\ns_mov_b64 exec, s[{sMask}:{sMask+1}]")
    xl = [f"buffer_load_dwordx4 {vr(vX+4*ks, 4)}, v57, {WSR}, 0 offen offset:{64*ks} sc1" for ks in range(8)]
    for x in xl: A(x)
    for e in range(8): A(f"v_mul_f32 v{vCg+e}, v{vCg+e}, -v{vPk+1}" if False else f"v_mul_f32_e64 v{vCg+e}, v{vCg+e}, -v{vPk+1}")
    A("s_waitcnt vmcnt(0)")
    retry([f"v_max3_u32 v2, v{vX}, v{vX+4}, v{vX+8}", f"v_max3_u32 v3, v{vX+12}, v{vX+16}, v{vX+20}", f"v_max3_u32 v2, v2, v{vX+24}, v{vX+28}",
           f"v_max_u32 v2, v2, v3", f"v_cmp_eq_u32 vcc, -1, v2"], xl, "L_x")
    A("s_mov_b64 exec, -1")
    for ks in range(8):
        for mat in range(2):
            A(f"v_mfma_f32_16x16x32_bf16 {vr(vCg+4*mat, 4)}, {ar(mat*32+ks*4, 4)}, {vr(vX+4*ks, 4)}, {vr(vCg+4*mat, 4)}")
    A(f"s_mov_b64 exec, s[{sMask}:{sMask+1}]\nds_write_b128 v59, {vr(vCg, 4)}\nds_write_b128 v59, {vr(vCg+4, 4)} offset:128\ns_mov_b64 exec, -1")
    A("s_waitcnt lgkmcnt(0)\ns_barrier")
    for w in range(4):
        for mat in range(2): A(f"ds_read_b128 {vr(vX + (mat*4+w)*4, 4)}, v58 offset:{w*256 + mat*128}")
    A("s_waitcnt lgkmcnt(0)")
    for mat in range(2):
        b = vX + mat*16
        for h in range(2):
            A(f"v_pk_add_f32 {vr(b+2*h, 2)}, {vr(b+2*h, 2)}, {vr(b+4+2*h, 2)}\nv_pk_add_f32 {vr(b+8+2*h, 2)}, {vr(b+8+2*h, 2)}, {vr(b+12+2*h, 2)}")
        for h in range(2): A(f"v_pk_add_f32 {vr(b+2*h, 2)}, {vr(b+2*h, 2)}, {vr(b+8+2*h, 2)}")
        for h in range(2): A(f"v_pk_mul_f32 {vr(b+2*h, 2)}, {vr(b+2*h, 2)}, {vr(vPk+2, 2)} op_sel_hi:[1,0]")
    g0, u0, t0 = vX, vX + 16, vX + 4
    for e in range(4): A(f"v_mul_f32 v{t0+e}, {hex(f2u(-LOG2E))}, v{g0+e}")
    for e in range(4): A(f"v_exp_f32 v{t0+e}, v{t0+e}")
    for e in range(4): A(f"v_mul_f32 v{g0+e}, v{g0+e}, v{u0+e}")
    for e in range(4): A(f"v_add_f32 v{t0+e}, 1.0, v{t0+e}")
    for e in range(4): A(f"v_rcp_f32 v{t0+e}, v{t0+e}")
    for e in range(4): A(f"v_mul_f32 v{g0+e}, v{g0+e}, v{t0+e}")
    A(f"v_cvt_pk_bf16_f32 v{g0}, v{g0}, v{g0+1}\nv_cvt_pk_bf16_f32 v{g0+1}, v{g0+2}, v{g0+3}")
    vB = vX + 8
    for e in range(8):
        A(f"v_cmp_eq_u32 vcc, {e}, v60\nv_cndmask_b32 v{vB+2*e}, 0, v{g0}, vcc\nv_cndmask_b32 v{vB+2*e+1}, 0, v{g0+1}, vcc")
    for q in range(4):
        for a in range(2):
            A(f"v_mfma_f32_16x16x32_bf16 {vr(vCg+4*a, 4)}, {vr(vWDf + a*16 + q*4, 4)}, {vr(vB+4*q, 4)}, {0 if q == 0 else vr(vCg+4*a, 4)}")
    A(f"s_lshl_b32 s{sT}, s{sMoe}, 13\ns_lshl_b32 s{sT1}, s{sWave}, 11\ns_add_u32 s{sT}, s{sT}, s{sT1}\ns_add_u32 s{sT}, s{sT}, {WS_YP}")
    for a in range(2): A(f"buffer_store_dwordx4 {vr(vCg+4*a, 4)}, v{vL16}, {WSR}, s{sT} offen offset:{1024*a} sc1")
    A("L_nomoe:")
    stamp("L")
    A(f"s_cmp_lt_u32 s{sJ}, 24\ns_cbranch_scc1 L_ldone")
    A(f"v_lshrrev_b32 v2, 3, v1\nv_and_b32 v3, 7, v1\nv_lshlrev_b32 v{vYa}, 13, v2\nv_lshl_add_u32 v{vYa}, v3, 4, v{vYa}")
    A(f"s_mul_i32 s{sB0}, s{sWave}, {56*8192}\ns_lshl_b32 s{sT}, s{sB1}, 7\ns_add_u32 s{sB0}, s{sB0}, s{sT}\ns_add_u32 s{sB0}, s{sB0}, {WS_YP}")
    yl = [f"s_add_u32 s{sT}, s{sB0}, {q*65536}\nbuffer_load_dwordx4 {vr(vX+4*q, 4)}, v{vYa}, {WSR}, s{sT} offen sc1" for q in range(7)]
    A(f"s_lshr_b32 s{sT}, s{sB1}, 1\ns_lshl_b32 s{sT}, s{sT}, 5\ns_and_b32 s{sT1}, s{sB1}, 1\ns_lshl_b32 s{sT1}, s{sT1}, 2\ns_add_u32 s{sT}, s{sT}, s{sT1}")
    A(f"v_bfe_u32 v4, v1, 3, 2\nv_lshlrev_b32 v4, 3, v4\nv_bfe_u32 v5, v1, 1, 2\nv_add3_u32 v{vN}, v4, v5, s{sT}\nv_lshlrev_b32 v{vN}, 1, v{vN}")
    A(f"v_lshl_add_u32 v64, v{vPk+3}, 11, v{vN}\ns_mov_b32 s{sT2}, {WS_CSEG}")
    hl = [f"buffer_load_ushort v{vH}, v64, {WSR}, s{sT2} offen sc1"]
    for x in hl + yl: A(x)
    A(f"v_and_b32 v65, 0xfffff800, v{vPk}\nv_not_b32 v4, v65\nv_ashrrev_i32 v4, 31, v4\nv_or_b32 v4, 0x80000000, v4\nv_xor_b32 v65, v65, v4")
    A(f"v_mul_f32 v65, {hex(f2u(-LOG2E))}, v65\nv_exp_f32 v65, v65\nv_add_f32 v65, 1.0, v65\nv_rcp_f32 v65, v65")
    A(f"v_and_b32 v66, 0x7ff, v{vPk}\nv_sub_u32 v66, 2047, v66\nv_lshl_add_u32 v66, v66, 11, v{vN}")
    A(f"v_add_f32 v67, 1.0, v{vPk+2}\nv_mul_f32_e64 v{vPk+1}, -v{vPk+1}, v{vPk+2}")
    A(f"s_lshl_b32 s{sT1}, s{sWave}, 7\ns_add_u32 s{sT1}, s{sT1}, {L_FIN}\nv_lshlrev_b32 v6, 4, v3\nv_add_u32 v6, s{sT1}, v6")
    A(f"v_bfe_u32 v4, v1, 3, 2\nv_lshlrev_b32 v7, 4, v3\nv_lshl_add_u32 v7, v4, 2, v7\nv_add_u32 v7, {L_FIN}, v7")
    A("s_waitcnt vmcnt(0)")
    retry([f"v_max3_u32 v2, v{vX}, v{vX+4}, v{vX+8}", f"v_max3_u32 v4, v{vX+12}, v{vX+16}, v{vX+20}", f"v_max3_u32 v2, v2, v4, v{vX+24}",
           f"v_or_b32 v4, 0xffff0000, v{vH}", f"v_max_u32 v2, v2, v4", f"v_cmp_eq_u32 vcc, -1, v2"], hl + yl, "L_y")
    for (d, s_) in ((0, 1), (2, 3), (4, 5), (0, 2), (4, 6), (0, 4)):
        for h in range(2): A(f"v_pk_add_f32 {vr(vX+4*d+2*h, 2)}, {vr(vX+4*d+2*h, 2)}, {vr(vX+4*s_+2*h, 2)}")
    for e in range(4): A(f"v_add_f32_dpp v{vX+e}, v{vX+e}, v{vX+e} row_ror:8 row_mask:0xf bank_mask:0xf")
    for sw in ("16", "32"):
        for e in range(4): A(f"v_mov_b32 v{vX+4+e}, v{vX+e}")
        for e in range(4): A(f"v_permlane{sw}_swap_b32 v{vX+e}, v{vX+4+e}")
        for e in range(4): A(f"v_add_f32 v{vX+e}, v{vX+e}, v{vX+4+e}")
    A(f"ds_write_b128 v6, {vr(vX, 4)}\ns_waitcnt lgkmcnt(0)\ns_barrier")
    A(f"s_cmp_lg_u32 s{sWave}, 0\ns_cbranch_scc1 L_ldone")
    for w in range(4): A(f"ds_read_b32 v{vX+w}, v7 offset:{128*w}")
    A(f"v_lshlrev_b32 v{vH}, 16, v{vH}\nv_fma_f32 v{vH}, v{vH}, v67, v{vPk+1}")
    A(f"s_waitcnt lgkmcnt(0)\nv_add_f32 v{vX}, v{vX}, v{vX+1}\nv_add_f32 v{vX+2}, v{vX+2}, v{vX+3}\nv_add_f32 v{vX}, v{vX}, v{vX+2}")
    A(f"v_fmac_f32 v{vH}, v{vX}, v65\nv_cvt_pk_bf16_f32 v{vH}, v{vH}, v{vH}\ns_mov_b64 exec, 0xffffffff")
    A(f"buffer_store_short v{vH}, v66, s[{SOUT}:{SOUT+3}], 0 offen sc1")
    A("L_ldone:")
    stamp("L")
    dump_stamps("L")
    A("s_endpgm")

    A("L_compute:")
    vm = VM()
    vL16 = 16
    vAr, vBr = 8, 12
    ACC = 32
    FA, FB, aOne = 0, 32, 80
    WIN = 81920
    def T(rb, c): return ACC + (rb*6 + c)*4
    A(f"v_and_b32 v2, 15, v1\nv_lshrrev_b32 v4, 4, v1\nv_lshrrev_b32 v3, 1, v2\nv_xor_b32 v3, v3, v4\nv_lshlrev_b32 v2, 7, v2")
    A(f"s_lshl_b32 s{sT}, s{sWm}, 13\nv_add_u32 v2, s{sT}, v2")
    for s in range(2):
        A(f"v_xor_b32 v5, {4*s}, v3\nv_lshl_add_u32 v{vAr+s}, v5, 4, v2\nv_add_u32 v{vAr+2+s}, {WIN}, v{vAr+s}")
    A(f"v_lshrrev_b32 v2, 5, v1\nv_mul_u32_u24 v2, 6144, v2\nv_bfe_u32 v3, v1, 4, 1\nv_lshl_add_u32 v2, v3, 10, v2")
    A(f"v_bfe_u32 v4, v1, 2, 2\nv_lshl_add_u32 v2, v4, 7, v2\nv_lshlrev_b32 v3, 1, v3\nv_bfe_u32 v4, v1, 3, 1\nv_or_b32 v3, v3, v4")
    A(f"s_lshl_b32 s{sT}, s{sWh}, 1\nv_xor_b32 v3, s{sT}, v3\nv_and_b32 v4, 3, v1\nv_lshl_add_u32 v2, v4, 3, v2\nv_add_u32 v2, 16384, v2")
    for cb in range(2):
        A(f"v_xor_b32 v4, {cb}, v3\nv_lshl_add_u32 v{vBr+cb}, v4, 5, v2\nv_add_u32 v{vBr+2+cb}, {WIN}, v{vBr+cb}")
    A("s_waitcnt lgkmcnt(0)")
    srd(A, SWS, 58, 59, 256 << 20)
    srd(A, SWR, 48, 49, 2048)
    srd(A, SOUT, 56, 57, 2048*1024*2)
    stamp("C")
    A(f"v_mov_b32 v2, 0\nbuffer_load_dword v19, v2, {WSR}, 0 offen sc1")
    A(f"buffer_load_dwordx4 v[20:23], v{vL16}, s[{SWR}:{SWR+3}], 0 offen\nbuffer_load_dwordx4 v[24:27], v{vL16}, s[{SWR}:{SWR+3}], 0 offen offset:1024")
    A(f"v_lshrrev_b32 v3, 4, v1\nv_lshlrev_b32 v3, 3, v3\ns_lshl_b32 s{sT}, s{sM}, 7")
    for c in range(4): A(f"buffer_load_dwordx2 {ar(96+2*c, 2)}, v3, s[{SWR}:{SWR+3}], s{sT} offen offset:{32*c}")
    for i in range(96): A(f"v_mov_b32 v{ACC+i}, 0")
    A(f"s_mov_b32 s{sT}, 0x3f803f80")
    for e in range(4): A(f"v_accvgpr_write_b32 a{aOne+e}, s{sT}")
    A(f"s_mov_b32 s{sEps}, {hex(f2u(1e-6))}\ns_mov_b32 s{sEps+1}, {hex(f2u(1e-6))}\ns_mov_b32 s{sOne}, {hex(f2u(1.000001))}\ns_mov_b32 s{sOne+1}, {hex(f2u(1.000001))}")
    A(f"s_mov_b32 s{sLog}, {hex(f2u(LOG2E))}\ns_mov_b32 s{sLog+1}, {hex(f2u(LOG2E))}")
    A("s_waitcnt vmcnt(4)")
    A(f"v_readfirstlane_b32 s{sTag}, v19")
    for q in range(8): A(f"v_lshlrev_b32 v{128+2*q}, 16, v{20+q}\nv_and_b32 v{129+2*q}, 0xffff0000, v{20+q}")
    A(f"s_add_u32 s{sTag}, s{sTag}, 1")
    for q in range(4): A(f"v_pk_add_f32 {vr(128+4*q, 2)}, {vr(128+4*q, 2)}, {vr(130+4*q, 2)}")
    A(f"v_pk_add_f32 v[128:129], v[128:129], v[132:133]\nv_pk_add_f32 v[136:137], v[136:137], v[140:141]\nv_pk_add_f32 v[128:129], v[128:129], v[136:137]\nv_add_f32 v2, v128, v129")
    for k in (1, 2, 4, 8): A(f"v_add_f32_dpp v2, v2, v2 row_ror:{k} row_mask:0xf bank_mask:0xf")
    for sw in ("16", "32"): A(f"v_mov_b32 v3, v2\nv_permlane{sw}_swap_b32 v2, v3\nv_add_f32 v2, v2, v3")
    A(f"v_readfirstlane_b32 s{sWsum}, v2")
    for e in range(4): A(f"v_mov_b32 v{20+e}, -1")
    A(f"s_lshl_b32 s{sB0}, s{sG}, 4\ns_add_u32 s{sB0}, s{sB0}, s{sM}\ns_mul_i32 s{sB0}, s{sB0}, {KVS}\ns_add_u32 s{sB0}, s{sB0}, {WS_KV}")
    A(f"s_lshl_b32 s{sB1}, s{sM}, 18\ns_lshl_b32 s{sT}, s{sWm}, 17\ns_add_u32 s{sB1}, s{sB1}, s{sT}\ns_lshl_b32 s{sT}, s{sG}, 11\ns_add_u32 s{sB1}, s{sB1}, s{sT}\ns_lshl_b32 s{sT}, s{sWh}, 10\ns_add_u32 s{sB1}, s{sB1}, s{sT}\ns_add_u32 s{sB1}, s{sB1}, {WS_O}")
    clears = []
    clears.append(f"s_lshl_b32 s{sT}, s{sWave}, 10\ns_add_u32 s{sT}, s{sT}, s{sB0}\nbuffer_store_dwordx4 v[20:23], v{vL16}, {WSR}, s{sT} offen sc1")
    for rb in range(4):
        clears.append(f"s_add_u32 s{sT}, s{sB1}, {rb*32768}\nbuffer_store_dwordx4 v[20:23], v{vL16}, {WSR}, s{sT} offen sc1")
    clears.append(f"s_min_u32 s{sT}, s{sMoe}, 223\ns_lshl_b32 s{sT}, s{sT}, 13\ns_lshl_b32 s{sT1}, s{sWave}, 11\ns_add_u32 s{sT}, s{sT}, s{sT1}\ns_add_u32 s{sT}, s{sT}, {WS_YP}\n"
                  f"s_cmp_lt_u32 s{sJ}, 28\ns_cbranch_scc0 L_noypc\nbuffer_store_dwordx4 v[20:23], v{vL16}, {WSR}, s{sT} offen sc1\nbuffer_store_dwordx4 v[20:23], v{vL16}, {WSR}, s{sT} offen offset:1024 sc1\nL_noypc:")
    clears.append(f"s_lshl_b32 s{sT}, s{sWave}, 6\ns_add_u32 s{sT}, s{sT}, s{sB0}\ns_add_u32 s{sT}, s{sT}, 4096\ns_mov_b64 exec, 0xf\nbuffer_store_dwordx4 v[20:23], v{vL16}, {WSR}, s{sT} offen sc1\ns_mov_b64 exec, -1")
    clears.append(f"s_lshl_b32 s{sT}, s{sG}, 12\ns_lshl_b32 s{sT1}, s{sWm}, 11\ns_add_u32 s{sT}, s{sT}, s{sT1}\ns_lshl_b32 s{sT1}, s{sM}, 7\ns_add_u32 s{sT}, s{sT}, s{sT1}\ns_lshl_b32 s{sT1}, s{sWh}, 6\ns_add_u32 s{sT}, s{sT}, s{sT1}\ns_add_u32 s{sT}, s{sT}, {WS_CSEG}\n"
                  f"s_mov_b64 exec, 0xf\nbuffer_store_dwordx4 v[20:23], v{vL16}, {WSR}, s{sT} offen sc1\ns_mov_b64 exec, -1")
    def win(slot): return (1, (slot-2)*SLOT) if slot >= 2 else (0, slot*SLOT)
    def reads(slot, s, buf):
        w, off = win(slot)
        La = [f"ds_read_b128 {ar(FA + (buf*4+rb)*4, 4)}, v{vAr+2*w+s} offset:{off + rb*2048}" for rb in range(4)]
        Lb = [f"ds_read_b64_tr_b16 {ar(FB + (buf*6+p*2+cb)*4 + 2*t, 2)}, v{vBr+2*w+cb} offset:{off + s*12288 + p*2048 + t*512}" for p in range(3) for cb in range(2) for t in range(2)]
        return [La[0], Lb[0], Lb[1], La[1], La[2], La[3]] + Lb[2:]
    def mfmas(buf, order=(0, 1, 2, 3, 4, 5)):
        L = []
        for c in order:
            for rb in range(4):
                a = ar(FA + (buf*4+rb)*4, 4); b = ar(FB + (buf*6+c)*4, 4); acc = vr(T(rb, c), 4)
                L.append(f"v_mfma_f32_16x16x32_bf16 {acc}, {b}, {a}, {acc}" if c < 2 else f"v_mfma_f32_16x16x32_bf16 {acc}, {a}, {b}, {acc}")
        return L
    CSA = 128
    def cs_publish():
        L = []
        L.append(f"s_cmp_lg_u32 s{sWm}, 0\ns_cbranch_scc1 L_nocsp")
        L.append(f"v_and_b32 v2, 16, v1\nv_cmp_ne_u32 vcc, 0, v2")
        for p in range(3): L.append(f"v_cndmask_b32 v{24+p}, v{CSA+8*p}, v{CSA+8*p+4}, vcc")
        L.append(f"v_mov_b32 v27, s{sTag}\ns_lshl_b32 s{sT}, s{sG}, 4\ns_add_u32 s{sT}, s{sT}, s{sM}\ns_lshl_b32 s{sT}, s{sT}, 10\ns_lshl_b32 s{sT1}, s{sWh}, 9\ns_add_u32 s{sT}, s{sT}, s{sT1}\ns_add_u32 s{sT}, s{sT}, {WS_CS}")
        L.append(f"s_mov_b64 exec, 0xffffffff\nbuffer_store_dwordx4 v[24:27], v{vL16}, {WSR}, s{sT} offen sc1\ns_mov_b64 exec, -1\nL_nocsp:")
        return ["\n".join(L)]
    NMr = [20, 128, 136, 144]; RSr = [24, 132, 140, 148]
    vS1, vS2 = 17, 18
    CSk = 8
    stat_addr = [f"v_lshrrev_b32 v2, 4, v1\nv_lshlrev_b32 v2, 4, v2\ns_lshl_b32 s{sT}, s{sWm}, 8\ns_add_u32 s{sT}, s{sT}, {L_NM}\nv_add_u32 v{vS1}, s{sT}, v2",
                 f"v_and_b32 v2, 15, v1\nv_lshlrev_b32 v2, 2, v2\ns_lshl_b32 s{sT}, s{sWh}, 7\ns_add_u32 s{sT}, s{sT}, {L_CSUM}\nv_add_u32 v{vS2}, s{sT}, v2"]
    stat_reads = []
    for rb in range(4):
        stat_reads.append(f"ds_read_b128 {vr(NMr[rb], 4)}, v{vS1} offset:{rb*64}")
        stat_reads.append(f"ds_read_b128 {vr(RSr[rb], 4)}, v{vS1} offset:{512 + rb*64}")
        if rb == 0:
            for i in range(4): stat_reads.append(f"ds_read_b32 v{CSk+i}, v{vS2} offset:{256*(1 + i//2) + 64*(i&1)}")
            stat_reads.append(f"v_mov_b32 v19, {L_FAST}\nds_read_b32 v19, v19")
    A("s_barrier")
    for x in reads(0, 0, 0): A(x)
    for st in range(16):
        slot = st % 3; last = st == 15
        for s in range(2):
            buf = s
            lasts = s == 1
            if lasts and last: r = stat_reads
            else: r = reads((slot+1) % 3, 0, buf ^ 1) if lasts else reads(slot, 1, buf ^ 1)
            extra = []
            if st == 0 and s == 1: extra = clears[:4]
            if st == 1 and s == 0: extra = clears[4:]
            if st == 3 and s == 0: extra = cs_publish()
            if st == 14 and s == 0: extra = stat_addr
            A("s_waitcnt lgkmcnt(0)")
            if st == 0:
                A(f"s_cmp_lg_u32 s{sWm}, 0\ns_cbranch_scc1 L_nocs{s}")
                for c in range(6):
                    A(f"v_mfma_f32_16x16x32_bf16 {vr(CSA+4*c, 4)}, {ar(aOne, 4)}, {ar(FB + (buf*6+c)*4, 4)}, {0 if s == 0 else vr(CSA+4*c, 4)}")
                A(f"L_nocs{s}:")
            ri = 0; ei = 0
            for i, mm in enumerate(mfmas(buf, (2, 3, 4, 5, 0, 1) if (lasts and last) else (0, 1, 2, 3, 4, 5))):
                A(mm)
                if lasts and i == 0:
                    if st == 4: A("s_waitcnt vmcnt(0)")
                    A("s_barrier")
                if ri < len(r):
                    A(r[ri]); ri += 1
                elif ei < len(extra) and i % 2 == 0:
                    A(extra[ei]); ei += 1
            assert ri == len(r) and ei == len(extra)
    stamp("C")
    def bc(reg):
        return vr(reg & ~1, 2), reg & 1
    def lnfold(t, nm, cs, kind):
        L = []
        for h in range(2):
            if kind == "row":
                p, o = bc(cs); L.append(f"v_pk_fma_f32 {vr(t+2*h, 2)}, {vr(nm+2*h, 2)}, {p}, {vr(t+2*h, 2)} op_sel:[0,{o},0] op_sel_hi:[1,{o},1]")
            else:
                p, o = bc(nm); L.append(f"v_pk_fma_f32 {vr(t+2*h, 2)}, {vr(cs+2*h, 2)}, {p}, {vr(t+2*h, 2)} op_sel:[0,{o},0] op_sel_hi:[1,{o},1]")
        return L
    def phi(t, rs, rl, kind, dst, tmp):
        L = []
        for h in range(2):
            if kind == "row":
                L.append(f"v_pk_mul_f32 {vr(tmp+2*h, 2)}, {vr(t+2*h, 2)}, {vr(rl+2*h, 2)}")
            else:
                p, o = bc(rl); L.append(f"v_pk_mul_f32 {vr(tmp+2*h, 2)}, {vr(t+2*h, 2)}, {p} op_sel:[0,{o}] op_sel_hi:[1,{o}]")
        for h in range(2):
            if kind == "row":
                L.append(f"v_pk_fma_f32 {vr(t+2*h, 2)}, {vr(t+2*h, 2)}, {vr(rs+2*h, 2)}, s[{sOne}:{sOne+1}]")
            else:
                p, o = bc(rs); L.append(f"v_pk_fma_f32 {vr(t+2*h, 2)}, {vr(t+2*h, 2)}, {p}, s[{sOne}:{sOne+1}] op_sel:[0,{o},0] op_sel_hi:[1,{o},1]")
        for e in range(4): L.append(f"v_exp_f32_e64 v{tmp+e}, v{tmp+e} clamp")
        for h in range(2): L.append(f"v_pk_add_f32 {vr(tmp+2*h, 2)}, {vr(tmp+2*h, 2)}, s[{sEps}:{sEps+1}]")
        for e in range(4): L.append(f"v_max_f32 v{t+e}, v{t+e}, v{tmp+e}")
        for h in range(2): L.append(f"v_cvt_pk_bf16_f32 v{dst+h}, v{t+2*h}, v{t+2*h+1}")
        return L
    def zip2(a, b):
        o = []
        for i in range(max(len(a), len(b))):
            if i < len(a): o.append(a[i])
            if i < len(b): o.append(b[i])
        return o
    KVa = lambda dt, et: T(1, 2 + dt*2 + et)
    Za = lambda dt: 20 + 4*dt
    A("s_waitcnt lgkmcnt(0)")
    A(f"v_readfirstlane_b32 s{sFast}, v19")
    for rb in range(4):
        P = rb >> 1; o = 2*(rb & 1)
        for h in range(2): A(f"v_pk_mul_f32 {vr(28+2*h, 2)}, {vr(RSr[rb]+2*h, 2)}, s[{sLog}:{sLog+1}]")
        k0 = lnfold(T(rb, 2), NMr[rb], CSk, "row") + phi(T(rb, 2), RSr[rb], 28, "row", T(2*P, 2) + o, 2)
        k1 = lnfold(T(rb, 3), NMr[rb], CSk+1, "row") + phi(T(rb, 3), RSr[rb], 28, "row", T(2*P, 3) + o, 12)
        for x in zip2(k0, k1): A(x)
        vv = []
        for cb in range(2):
            t = T(rb, 4+cb)
            L = lnfold(t, NMr[rb], CSk+2+cb, "row")
            for h in range(2): L.append(f"v_pk_mul_f32 {vr(t+2*h, 2)}, {vr(t+2*h, 2)}, {vr(RSr[rb]+2*h, 2)}")
            for h in range(2): L.append(f"v_cvt_pk_bf16_f32 v{T(2*P, 4+cb)+o+h}, v{t+2*h}, v{t+2*h+1}")
            vv.append(L)
        for x in zip2(vv[0], vv[1]): A(x)
        if rb & 1:
            for dt in range(2):
                for et in range(2):
                    A(f"v_mfma_f32_16x16x32_bf16 {vr(KVa(dt, et), 4)}, {vr(T(2*P, 2+dt), 4)}, {vr(T(2*P, 4+et), 4)}, {0 if P == 0 else vr(KVa(dt, et), 4)}")
                A(f"v_mfma_f32_16x16x32_bf16 {vr(Za(dt), 4)}, {vr(T(2*P, 2+dt), 4)}, {ar(aOne, 4)}, {0 if P == 0 else vr(Za(dt), 4)}")
    A(f"s_lshl_b32 s{sT}, s{sWave}, 11\ns_add_u32 s{sT}, s{sT}, {L_EX}\nv_add_u32 v2, s{sT}, v{vL16}\nv_xor_b32 v3, 4096, v2")
    A(f"v_lshrrev_b32 v4, 4, v1\nv_lshlrev_b32 v5, 4, v4\nv_lshlrev_b32 v4, 5, v4\ns_lshl_b32 s{sT}, s{sWave}, 6\ns_add_u32 s{sT}, s{sT}, {L_ZEX}\nv_add_u32 v5, s{sT}, v5\nv_xor_b32 v6, 128, v5")
    A(f"s_lshl_b32 s{sT2}, s{sWh}, 1\ns_add_u32 s{sT2}, s{sT2}, s{sWm}\ns_lshl_b32 s{sT2}, s{sT2}, 10\ns_add_u32 s{sT2}, s{sT2}, s{sB0}")
    A(f"s_lshl_b32 s{sT3}, s{sWh}, 7\ns_lshl_b32 s{sT}, s{sWm}, 4\ns_add_u32 s{sT3}, s{sT3}, s{sT}\ns_add_u32 s{sT3}, s{sT3}, s{sB0}\ns_add_u32 s{sT3}, s{sT3}, 4096")
    A(f"s_mov_b32 s{sMask}, 0x00010001\ns_mov_b32 s{sMask+1}, 0x00010001")
    A(f"s_cmp_eq_u32 s{sWm}, 0\ns_cbranch_scc0 L_ex1")
    R = 128
    def exch(wm):
        L = [f"ds_write_b128 v2, {vr(KVa(0, 1-wm), 4)}", f"ds_write_b128 v2, {vr(KVa(1, 1-wm), 4)} offset:1024", f"ds_write_b128 v5, {vr(Za(1-wm), 4)}",
             "s_waitcnt lgkmcnt(0)", "s_barrier",
             f"ds_read_b128 {vr(R, 4)}, v3", f"ds_read_b128 {vr(R+4, 4)}, v3 offset:1024", f"ds_read_b128 {vr(R+8, 4)}, v6",
             "s_waitcnt lgkmcnt(1)"]
        for dt in range(2):
            for h in range(2): L.append(f"v_pk_add_f32 {vr(R+4*dt+2*h, 2)}, {vr(R+4*dt+2*h, 2)}, {vr(KVa(dt, wm)+2*h, 2)}")
        L.append("s_waitcnt lgkmcnt(0)")
        for h in range(2): L.append(f"v_pk_add_f32 {vr(R+8+2*h, 2)}, {vr(R+8+2*h, 2)}, {vr(Za(wm)+2*h, 2)}")
        return L
    for x in exch(0): A(x)
    A("L_ex_d:")
    out_of_line.append("L_ex1:\n" + "\n".join(exch(1)) + "\ns_branch L_ex_d")
    for e in range(4): A(f"v_cvt_pk_bf16_f32 v{R+12+e}, v{R+2*e}, v{R+2*e+1}")
    fast_slow(lambda f: [f"buffer_store_dwordx4 {vr(R+12, 4)}, v{vL16}, {WSR}, s{sT2} offen{f}", f"s_mov_b64 exec, s[{sMask}:{sMask+1}]",
                         f"buffer_store_dwordx4 {vr(R+8, 4)}, v4, {WSR}, s{sT3} offen{f}", "s_mov_b64 exec, -1"], "L_kvp")
    stamp("C")
    NMq, RSq, RLq, CSq = 8, 12, 20, 144
    A(f"v_and_b32 v2, 15, v1\nv_lshlrev_b32 v2, 2, v2\ns_lshl_b32 s{sT}, s{sWm}, 8\ns_add_u32 s{sT}, s{sT}, {L_NM}\nv_add_u32 v2, s{sT}, v2")
    A(f"v_lshrrev_b32 v3, 4, v1\nv_lshlrev_b32 v3, 4, v3\ns_lshl_b32 s{sT}, s{sWh}, 7\ns_add_u32 s{sT}, s{sT}, {L_CSUM}\nv_add_u32 v5, s{sT}, v3")
    for rb in range(4): A(f"ds_read_b32 v{NMq+rb}, v2 offset:{64*rb}\nds_read_b32 v{RSq+rb}, v2 offset:{512 + 64*rb}")
    for c in range(2): A(f"ds_read_b128 {vr(CSq+4*c, 4)}, v5 offset:{64*c}")
    A(f"s_lshl_b32 s{sT}, s{sWh}, 11\ns_add_u32 s{sT}, s{sT}, {L_KVF}\nv_add_u32 v17, s{sT}, v{vL16}\ns_lshl_b32 s{sT}, s{sWh}, 6\ns_add_u32 s{sT}, s{sT}, {L_ZF}\nv_add_u32 v18, s{sT}, v3")
    A("s_waitcnt lgkmcnt(0)")
    for h in range(2): A(f"v_pk_mul_f32 {vr(RLq+2*h, 2)}, {vr(RSq+2*h, 2)}, s[{sLog}:{sLog+1}]")
    for rb in range(4):
        q0 = lnfold(T(rb, 0), NMq+rb, CSq, "col") + phi(T(rb, 0), RSq+rb, RLq+rb, "col", T(rb, 0), 24)
        q1 = lnfold(T(rb, 1), NMq+rb, CSq+4, "col") + phi(T(rb, 1), RSq+rb, RLq+rb, "col", T(rb, 0) + 2, 28)
        for x in zip2(q0[:-2], q1[:-2]) + q0[-2:] + q1[-2:]: A(x)
    vWb, vWc, vXa, vO2 = 8, 12, 20, 19
    A(f"v_lshrrev_b32 v2, 4, v1\nv_bfe_u32 v3, v1, 2, 2\nv_lshl_add_u32 v4, v2, 2, v3\nv_lshlrev_b32 v5, 7, v4\nv_bfe_u32 v4, v4, 1, 2\nv_lshl_add_u32 v5, v4, 5, v5")
    A(f"v_and_b32 v4, 3, v1\nv_lshl_add_u32 v5, v4, 3, v5\nv_add_u32 v{vWb}, {L_WO}, v5")
    for c in range(1, 4): A(f"v_xor_b32 v{vWb+c}, {32*c}, v{vWb}")
    A(f"v_and_b32 v3, 15, v1\nv_lshrrev_b32 v4, 1, v3\nv_lshrrev_b32 v5, 1, v2\nv_xor_b32 v4, v4, v5\nv_lshlrev_b32 v4, 4, v4\nv_lshl_add_u32 v4, v3, 7, v4\nv_and_b32 v5, 1, v2\nv_lshl_add_u32 v4, v5, 3, v4")
    A(f"s_lshl_b32 s{sT}, s{sWave}, 12\nv_add_u32 v{vXa}, s{sT}, v4")
    for c in range(1, 4): A(f"v_xor_b32 v{vXa+c}, {32*c}, v{vXa}")
    A(f"v_add_u32 v{vO2}, 32768, v{vL16}")
    A(f"s_lshl_b32 s{sKA}, s{sG}, 18\ns_lshl_b32 s{sT}, s{sWave}, 16\ns_add_u32 s{sKA}, s{sKA}, s{sT}\ns_add_u32 s{sKA}, s{sKA}, {WS_O}")
    A("s_barrier")
    stamp("C")
    A(f"ds_read_b128 a[0:3], v17\nds_read_b128 a[4:7], v17 offset:1024\nds_read_b128 a[8:11], v18\ns_waitcnt lgkmcnt(0)")
    for rb in range(4):
        A(f"v_mfma_f32_16x16x32_bf16 {vr(T(rb, 4), 4)}, a[8:11], {vr(T(rb, 0), 4)}, 0")
        A(f"v_mfma_f32_16x16x32_bf16 {vr(T(rb, 2), 4)}, a[0:3], {vr(T(rb, 0), 4)}, 0")
        A(f"v_mfma_f32_16x16x32_bf16 {vr(T(rb, 3), 4)}, a[4:7], {vr(T(rb, 0), 4)}, 0")
    for rb in range(4):
        d = T(rb, 4)
        A(f"v_add_f32 v{d}, s{sEps}, v{d}\nv_rcp_f32 v{d}, v{d}")
        for et in range(2):
            for h in range(2): A(f"v_pk_mul_f32 {vr(T(rb, 2+et)+2*h, 2)}, {vr(T(rb, 2+et)+2*h, 2)}, {vr(d, 2)} op_sel_hi:[1,0]")
        for et in range(2):
            for h in range(2): A(f"v_cvt_pk_bf16_f32 v{T(rb, 5)+2*et+h}, v{T(rb, 2+et)+2*h}, v{T(rb, 2+et)+2*h+1}")
        A(f"s_add_u32 s{sT}, s{sB1}, {rb*32768}\nbuffer_store_dwordx4 {vr(T(rb, 5), 4)}, v{vL16}, {WSR}, s{sT} offen sc1")
    stamp("C")
    vm = VM()
    AC2, OB = 24, 56
    ND = odepth
    def OBr(i, hh, rb): return OB + (i % ND)*16 + (hh*2 + rb)*4
    def o_loads(i):
        L = [f"s_add_u32 s{sT}, s{sM}, {i}\ns_and_b32 s{sT}, s{sT}, 15\ns_lshl_b32 s{sT}, s{sT}, 11\ns_add_u32 s{sT}, s{sT}, s{sKA}"]
        for hh in range(2):
            for rb in range(2):
                L.append(f"buffer_load_dwordx4 {vr(OBr(i, hh, rb), 4)}, v{vO2 if rb else vL16}, {WSR}, s{sT} offen offset:{1024*hh} sc1")
        return L
    def o_check(i):
        A(vm.wait(f"o{i}"))
        retry([f"v_max3_u32 v2, v{OBr(i,0,0)}, v{OBr(i,0,1)}, v{OBr(i,1,0)}", f"v_max_u32 v2, v2, v{OBr(i,1,1)}", "v_cmp_eq_u32 vcc, -1, v2"], o_loads(i), f"L_o{i}")
    def wo_cur(i):
        return [f"s_add_u32 s{sT1}, s{sM}, {i}\ns_and_b32 s{sT1}, s{sT1}, 15\ns_lshl_b32 s{sT1}, s{sT1}, 13"] + [f"v_add_u32 v{vWc+c}, s{sT1}, v{vWb+c}" for c in range(4)]
    def wo_reads(hh, buf):
        return [f"ds_read_b64_tr_b16 {ar(buf*16 + c*4 + 2*t, 2)}, v{vWc+c} offset:{hh*4096 + t*2048}" for c in range(4) for t in range(2)]
    for i in range(ND):
        for x in o_loads(i): A(x)
        vm.issue(f"o{i}", 4)
    for rb in range(2):
        for c in range(4): A(f"ds_read_b64 {vr(AC2 + (rb*4+c)*4 + 2, 2)}, v{vXa+c} offset:{rb*2048}")
    for x in wo_cur(0): A(x)
    A("s_waitcnt lgkmcnt(0)")
    for x in wo_reads(0, 0): A(x)
    for t in range(8):
        b = AC2 + 4*t
        A(f"v_lshlrev_b32 v{b}, 16, v{b+2}\nv_and_b32 v{b+1}, 0xffff0000, v{b+2}\nv_lshlrev_b32 v{b+2}, 16, v{b+3}\nv_and_b32 v{b+3}, 0xffff0000, v{b+3}")
    o_check(0)
    stamp("C")
    for i in range(16):
        for hh in range(2):
            buf = hh
            mm = [f"v_mfma_f32_16x16x32_bf16 {vr(AC2 + (rb*4+c)*4, 4)}, {ar(buf*16 + c*4, 4)}, {vr(OBr(i, hh, rb), 4)}, {vr(AC2 + (rb*4+c)*4, 4)}" for c in range(4) for rb in range(2)]
            A("s_waitcnt lgkmcnt(0)")
            if hh == 0:
                fill = wo_reads(1, 1)
                for k in range(8):
                    A(mm[k]); A(fill[k])
                if i < 15:
                    for x in wo_cur(i+1): A(x)
            else:
                fill = wo_reads(0, 0) if i < 15 else []
                for k in range(8):
                    A(mm[k])
                    if k < len(fill): A(fill[k])
                if i + ND < 16:
                    for x in o_loads(i + ND): A(x)
                    vm.issue(f"o{i+ND}", 4)
                if i < 15: o_check(i + 1)
    A("s_barrier")
    stamp("C")
    W = 56; S = 72
    for q in range(8): A(f"v_accvgpr_read_b32 v{88+q}, a{96+q}")
    for q in range(8): A(f"v_lshlrev_b32 v{W+2*q}, 16, v{88+q}\nv_and_b32 v{W+2*q+1}, 0xffff0000, v{88+q}")
    for rb in range(2):
        b = AC2 + rb*16; s_ = S + rb*8
        A(f"v_pk_add_f32 {vr(s_, 2)}, {vr(b, 2)}, {vr(b+2, 2)}\nv_pk_mul_f32 {vr(s_+2, 2)}, {vr(b, 2)}, {vr(b, 2)}\nv_pk_mul_f32 {vr(s_+4, 2)}, {vr(b, 2)}, {vr(W, 2)}")
        for q in range(1, 8):
            if q >= 2: A(f"v_pk_add_f32 {vr(s_, 2)}, {vr(s_, 2)}, {vr(b+2*q, 2)}")
            A(f"v_pk_fma_f32 {vr(s_+2, 2)}, {vr(b+2*q, 2)}, {vr(b+2*q, 2)}, {vr(s_+2, 2)}\nv_pk_fma_f32 {vr(s_+4, 2)}, {vr(b+2*q, 2)}, {vr(W+2*q, 2)}, {vr(s_+4, 2)}")
        for e in range(3): A(f"v_add_f32 v{s_+e}, v{s_+2*e}, v{s_+2*e+1}")
    for e in range(3): A(f"v_permlane32_swap_b32 v{S+e}, v{S+8+e}")
    for e in range(3): A(f"v_add_f32 v{S+e}, v{S+e}, v{S+8+e}")
    for e in range(3): A(f"v_mov_b32 v{S+8+e}, v{S+e}")
    for e in range(3): A(f"v_permlane16_swap_b32 v{S+e}, v{S+8+e}")
    for e in range(3): A(f"v_add_f32 v{S+e}, v{S+e}, v{S+8+e}")
    A(f"v_mov_b32 v{S+3}, s{sTag}")
    A(f"v_and_b32 v2, 15, v1\nv_lshrrev_b32 v3, 5, v1\nv_lshlrev_b32 v4, 4, v2\nv_lshl_add_u32 v4, v3, 8, v4")
    A(f"s_lshl_b32 s{sKB}, s{sG}, 15\ns_lshl_b32 s{sT}, s{sWave}, 9\ns_add_u32 s{sKB}, s{sKB}, s{sT}\ns_add_u32 s{sKB}, s{sKB}, {WS_ST}\ns_lshl_b32 s{sT}, s{sM}, 11\ns_add_u32 s{sT2}, s{sKB}, s{sT}")
    A(f"s_mov_b32 s{sMask}, 0xffff\ns_mov_b32 s{sMask+1}, 0xffff\ns_mov_b64 exec, s[{sMask}:{sMask+1}]")
    fast_slow(lambda f: [f"buffer_store_dwordx4 {vr(S, 4)}, v4, {WSR}, s{sT2} offen{f}"], "L_stp")
    A("s_mov_b64 exec, -1")
    GS = 96
    A(f"v_and_b32 v2, 31, v1\nv_lshlrev_b32 v5, 4, v2\nv_lshl_add_u32 v5, v3, 11, v5")
    stl = [f"s_add_u32 s{sT}, s{sKB}, {4096*j}\nbuffer_load_dwordx4 {vr(GS+4*j, 4)}, v5, {WSR}, s{sT} offen sc1" for j in range(8)]
    for x in stl: A(x)
    stamp("C")
    for rb in range(2):
        for c in range(4):
            b = AC2 + (rb*4+c)*4; t = 128 + 2*(rb*4+c)
            A(f"v_cvt_pk_bf16_f32 v{t}, v{b}, v{b+1}\nv_cvt_pk_bf16_f32 v{t+1}, v{b+2}, v{b+3}\nds_write_b64 v{vXa+c}, {vr(t, 2)} offset:{rb*2048}")
    A(f"s_lshl_b32 s{sT}, s{sG}, 7\ns_lshl_b32 s{sT1}, s{sWave}, 5\ns_add_u32 s{sT}, s{sT}, s{sT1}\ns_sub_u32 s{sT}, 2047, s{sT}\nv_sub_u32 v6, s{sT}, v2")
    A(f"s_lshl_b32 s{sT}, s{sWave}, 9\ns_add_u32 s{sT}, s{sT}, {L_ST2}\nv_lshlrev_b32 v7, 4, v2\nv_add_u32 v7, s{sT}, v7")
    A("s_waitcnt vmcnt(0)")
    chk = [f"v_xor_b32 v{88+j}, s{sTag}, v{GS+4*j+3}" for j in range(8)] + ["v_or3_b32 v88, v88, v89, v90", "v_or3_b32 v91, v91, v92, v93", "v_or3_b32 v88, v88, v94, v95", "v_or_b32 v88, v88, v91", "v_cmp_ne_u32 vcc, 0, v88"]
    retry(chk, stl, "L_st")
    for (d, s_) in ((0, 1), (2, 3), (4, 5), (6, 7), (0, 2), (4, 6), (0, 4)):
        A(f"v_pk_add_f32 {vr(GS+4*d, 2)}, {vr(GS+4*d, 2)}, {vr(GS+4*s_, 2)}\nv_add_f32 v{GS+4*d+2}, v{GS+4*d+2}, v{GS+4*s_+2}")
    for e in range(3): A(f"v_mov_b32 v{GS+4+e}, v{GS+e}")
    for e in range(3): A(f"v_permlane32_swap_b32 v{GS+e}, v{GS+4+e}")
    for e in range(3): A(f"v_add_f32 v{GS+e}, v{GS+e}, v{GS+4+e}")
    K = 72
    A(f"v_mul_f32 v{K+1}, {hex(f2u(1.0/1024))}, v{GS}\nv_mul_f32 v{GS+1}, {hex(f2u(1.0/1024))}, v{GS+1}")
    A(f"v_fma_f32 v{GS+1}, -v{K+1}, v{K+1}, v{GS+1}\nv_fma_f32 v{GS+2}, -v{K+1}, s{sWsum}, v{GS+2}\nv_max_f32 v{GS+1}, 0, v{GS+1}\nv_add_f32 v{GS+1}, {hex(f2u(1e-5))}, v{GS+1}")
    A(f"v_rsq_f32 v{K+2}, v{GS+1}\nv_mov_b32 v{K+3}, s{sTag}\nv_mul_f32 v{GS+2}, v{GS+2}, v{K+2}")
    A(f"v_ashrrev_i32 v{GS+3}, 31, v{GS+2}\nv_or_b32 v{GS+3}, 0x80000000, v{GS+3}\nv_xor_b32 v{GS+2}, v{GS+2}, v{GS+3}\ns_mov_b32 s{sT}, 0xfffff800\nv_and_or_b32 v{K}, v{GS+2}, s{sT}, v6")
    A(f"ds_write_b128 v7, {vr(K, 4)}")
    def top2_32(key, hi, lo, t1, t2):
        A(f"v_mov_b32_dpp v{t1}, v{key} row_ror:1 row_mask:0xf bank_mask:0xf\nv_max_u32 v{hi}, v{key}, v{t1}\nv_min_u32 v{lo}, v{key}, v{t1}")
        for k in (2, 4, 8):
            A(f"v_mov_b32_dpp v{t1}, v{hi} row_ror:{k} row_mask:0xf bank_mask:0xf\nv_max_u32_dpp v{t2}, v{lo}, v{lo} row_ror:{k} row_mask:0xf bank_mask:0xf")
            A(f"v_med3_u32 v{lo}, v{hi}, v{t1}, v{t2}\nv_max_u32 v{hi}, v{hi}, v{t1}")
        A(f"v_mov_b32 v{t1}, v{hi}\nv_mov_b32 v{t2}, v{lo}\nv_permlane16_swap_b32 v{hi}, v{t1}\nv_permlane16_swap_b32 v{lo}, v{t2}")
        A(f"v_max_u32 v{t2}, v{lo}, v{t2}\nv_med3_u32 v{lo}, v{hi}, v{t1}, v{t2}\nv_max_u32 v{hi}, v{hi}, v{t1}")
    top2_32(K, 76, 77, 78, 79)
    A(f"s_lshl_b32 s{sT}, s{sWave}, 3\ns_add_u32 s{sT}, s{sT}, {L_TOP}\nv_mov_b32 v2, s{sT}\nds_write_b64 v2, v[76:77]\nv_mov_b32 v2, {L_TOP}")
    A(f"v_add_f32 v80, 1.0, v{K+2}\nv_mul_f32_e64 v82, -v{K+1}, v{K+2}\nv_mov_b32 v81, v80\nv_mov_b32 v83, v82\nv_permlane16_swap_b32 v80, v81\nv_permlane16_swap_b32 v82, v83")
    A("s_waitcnt lgkmcnt(0)\ns_barrier")
    stamp("C")
    A(f"ds_read_b128 v[88:91], v2\nds_read_b128 v[92:95], v2 offset:16\ns_waitcnt lgkmcnt(0)")
    A(f"v_max_u32 v89, v89, v91\nv_max_u32 v93, v93, v95\nv_med3_u32 v89, v88, v90, v89\nv_med3_u32 v93, v92, v94, v93\nv_max_u32 v88, v88, v90\nv_max_u32 v92, v92, v94")
    A(f"v_max_u32 v89, v89, v93\nv_med3_u32 v89, v88, v92, v89\nv_max_u32 v88, v88, v92")
    A(f"v_readfirstlane_b32 s{sK2}, v89\nv_readfirstlane_b32 s{sK1}, v88")
    A(f"s_not_b32 s{sC1}, s{sK2}\ns_and_b32 s{sC1}, s{sC1}, 127\ns_not_b32 s{sC0}, s{sK1}\ns_and_b32 s{sC0}, s{sC0}, 127")
    A(f"s_cmp_lg_u32 s{sWave}, 0\ns_cbranch_scc1 L_nocand")
    A(f"v_mov_b32 v2, s{sC0}\nv_mov_b32 v3, s{sC1}\nv_and_b32 v4, 8, v1\nv_cmp_ne_u32 vcc, 0, v4\nv_cndmask_b32 v5, v2, v3, vcc")
    A(f"v_bfe_u32 v6, v5, 1, 3\nv_and_b32 v7, 7, v1\nv_xor_b32 v6, v6, v7\nv_lshlrev_b32 v6, 4, v6\nv_lshl_add_u32 v6, v5, 7, v6\nds_read_b128 v[88:91], v6")
    A(f"v_cmp_eq_u32 vcc, 1, v1\nv_cndmask_b32 v5, v2, v3, vcc\nv_lshlrev_b32 v5, 4, v5\nv_add_u32 v5, {L_ST2}, v5\nds_read_b128 v[92:95], v5")
    A(f"v_lshlrev_b32 v4, 8, v4\nv_lshl_add_u32 v4, v7, 4, v4")
    A(f"s_lshl_b32 s{sT}, s{sG}, 12\ns_lshl_b32 s{sT1}, s{sM}, 7\ns_add_u32 s{sT}, s{sT}, s{sT1}\ns_add_u32 s{sT}, s{sT}, {WS_CSEG}")
    A(f"s_lshl_b32 s{sT1}, s{sG}, 5\ns_add_u32 s{sT1}, s{sT1}, {WS_REC}")
    A(f"s_mov_b64 exec, 0xffff\ns_waitcnt lgkmcnt(1)\nbuffer_store_dwordx4 v[88:91], v4, {WSR}, s{sT} offen sc1")
    A(f"s_cmp_lg_u32 s{sG}, s{sM}\ns_cbranch_scc1 L_norec\ns_mov_b64 exec, 3\ns_waitcnt lgkmcnt(0)\nbuffer_store_dwordx4 v[92:95], v{vL16}, {WSR}, s{sT1} offen sc1\nL_norec:\ns_mov_b64 exec, -1")
    A("L_nocand:")
    recl = [f"buffer_load_dwordx4 v[84:87], v8, {WSR}, s{sKB} offen sc1"]
    A(f"v_and_b32 v8, 31, v1\nv_lshlrev_b32 v8, 4, v8\ns_mov_b32 s{sKB}, {WS_REC}")
    for rb in range(2):
        for c in range(4):
            b = AC2 + (rb*4+c)*4; t = 128 + 2*(rb*4+c)
            for h in range(2): A(f"v_pk_fma_f32 {vr(b+2*h, 2)}, {vr(b+2*h, 2)}, v[80:81], v[82:83] op_sel:[0,{rb},{rb}] op_sel_hi:[1,{rb},{rb}]")
            A(f"v_cvt_pk_bf16_f32 v{t}, v{b}, v{b+1}\nv_cvt_pk_bf16_f32 v{t+1}, v{b+2}, v{b+3}\nds_write_b64 v{vXa+c}, {vr(t, 2)} offset:{L_OUT + rb*2048}")
    A(f"v_lshrrev_b32 v2, 3, v1\nv_lshrrev_b32 v3, 4, v1\nv_and_b32 v4, 7, v1\nv_xor_b32 v3, v3, v4\nv_lshlrev_b32 v3, 4, v3\nv_lshl_add_u32 v3, v2, 7, v3")
    A(f"s_lshl_b32 s{sT}, s{sWave}, 12\nv_add_u32 v9, s{sT}, v3\nv_xor_b32 v10, 64, v9")
    A(f"v_lshlrev_b32 v11, 11, v2\nv_lshl_add_u32 v11, v4, 4, v11\ns_lshl_b32 s{sT}, s{sWave}, 5\nv_add_u32 v12, s{sT}, v2")
    A(f"s_lshl_b32 s{sB0}, s{sG}, 18\ns_lshl_b32 s{sT}, s{sWave}, 16\ns_add_u32 s{sB0}, s{sB0}, s{sT}\ns_lshl_b32 s{sT}, s{sM}, 7\ns_add_u32 s{sB0}, s{sB0}, s{sT}")
    A("s_waitcnt lgkmcnt(0)")
    OT = 96
    for i in range(4): A(f"ds_read_b128 {vr(OT+4*i, 4)}, v{10 if i & 1 else 9} offset:{L_OUT + 1024*i}")
    sCm = 96
    for i in range(4):
        A(f"v_add_u32 v2, {8*i}, v12\nv_cmp_ne_u32 vcc, s{sC0}, v2\nv_cmp_ne_u32_e64 s[{sMask}:{sMask+1}], s{sC1}, v2\ns_add_u32 s{sT}, s{sB0}, {16384*i}")
        A(f"s_waitcnt lgkmcnt({3-i})\ns_and_b64 exec, vcc, s[{sMask}:{sMask+1}]\nbuffer_store_dwordx4 {vr(OT+4*i, 4)}, v11, s[{SOUT}:{SOUT+3}], s{sT} offen\ns_mov_b64 exec, -1")
    stamp("C")
    A(f"s_cmp_lg_u32 s{sWave}, 1\ns_cbranch_scc1 L_nopick")
    for x in recl: A(x)
    A("s_waitcnt vmcnt(0)")
    retry([f"v_cmp_ne_u32 vcc, s{sTag}, v87"], recl, "L_rec")
    top2_32(84, 76, 77, 78, 79)
    A(f"v_cmp_eq_u32 vcc, v84, v77\nv_cmp_eq_u32_e64 s[{sMask}:{sMask+1}], v84, v76\nv_lshrrev_b32 v87, 4, v8\nv_mov_b32 v2, {L_PICK}\nv_mov_b32 v3, {L_PICK+16}\nv_cndmask_b32 v2, v2, v3, vcc")
    A(f"s_or_b64 exec, vcc, s[{sMask}:{sMask+1}]\nds_write_b128 v2, v[84:87]\ns_mov_b64 exec, -1")
    A(f"s_cmp_lg_u32 s2, 0\ns_cbranch_scc1 L_nopick\nv_mov_b32 v2, s{sTag}\nv_mov_b32 v3, 0\ns_mov_b64 exec, 1\nbuffer_store_dword v2, v3, {WSR}, 0 offen sc1\ns_mov_b64 exec, -1")
    A("L_nopick:")
    A(f"v_mov_b32 v2, {L_PICK}\ns_waitcnt lgkmcnt(0)\ns_barrier")
    stamp("C")
    A(f"ds_read_b32 v3, v2\nds_read_b32 v4, v2 offset:16\ns_waitcnt lgkmcnt(0)\nv_readfirstlane_b32 s{sT2}, v3\nv_readfirstlane_b32 s{sT3}, v4")
    for (k, c) in ((sK1, sC0), (sK2, sC1)):
        A(f"s_cmp_eq_u32 s{k}, s{sT2}\ns_cselect_b32 s{c}, 255, s{c}\ns_cmp_eq_u32 s{k}, s{sT3}\ns_cselect_b32 s{c}, 255, s{c}")
    for i in range(4):
        A(f"v_add_u32 v2, {8*i}, v12\nv_cmp_eq_u32 vcc, s{sC0}, v2\nv_cmp_eq_u32_e64 s[{sMask}:{sMask+1}], s{sC1}, v2\ns_add_u32 s{sT}, s{sB0}, {16384*i}")
        A(f"s_or_b64 exec, vcc, s[{sMask}:{sMask+1}]\ns_cbranch_execz L_nodef{i}\nbuffer_store_dwordx4 {vr(OT+4*i, 4)}, v11, s[{SOUT}:{SOUT+3}], s{sT} offen\nL_nodef{i}:\ns_mov_b64 exec, -1")
    stamp("C")
    dump_stamps("C")
    A("L_end:\ns_endpgm")
    for x in out_of_line: A(x)
    A('.section .rodata,"a"\n.p2align 6')
    kernel_desc(A, name, 152, 104)
    txt, n = hazard.fix(A.text())
    return txt

if __name__ == "__main__":
    kw = eval("dict(%s)" % sys.argv[2]) if len(sys.argv) > 2 else {}
    out = sys.argv[1] if len(sys.argv) > 1 else os.path.join(os.path.dirname(os.path.abspath(__file__)), "..", NAME + ".s")
    open(out, "w").write(gen(**kw))
```

```python
import sys, os
sys.path.insert(0, os.path.dirname(os.path.abspath(__file__)))
from asmlib import *
import hazard

NAME = "sequential_preLN__linear_attn_block__moe_arch_mod__prompt"

WS_EPOCH = 0
WS_IDR = 0x1000
WS_RS = 0x2000
WS_CS = 0x10000
WS_KV = 0x80000
KVS = 4352
WS_O = 0x200000
WS_ST = 0x600000
WS_REC = 0x680000
WS_CSEG = 0x690000
WS_PX = 0x6A0000
WS_YP = 0x700000
WS_DBG = 0x1000000

LA = [122880, 106496, 65536, 24576]
LB = [0, 81920, 40960]
L_XT = 0
L_EX = 16384
L_KVF = 24576
L_WO = 28672
L_ST = 159744
L_NM, L_RS, L_CSUM = L_ST, L_ST + 512, L_ST + 1024
L_FAST = L_ST + 1792
L_ZF = L_ST + 1856
L_TOP = L_ST + 2048
L_PICK = L_ST + 2112
L_RED = L_ST + 2304
L_FIN = L_ST + 3328
L_ZEX = L_ST + 3840
L_OUT = 32768
L_MOE = 65536
L_ST2 = 49152

SENT = -1
LOG2E = 1.4426950408889634

def f2u(x):
    import struct
    return struct.unpack("<I", struct.pack("<f", x))[0]

class VM:
    def __init__(self): self.n = 0; self.tags = {}
    def issue(self, tag=None, k=1):
        self.n += k
        if tag: self.tags[tag] = self.n
    def wait(self, tag):
        c = self.n - self.tags[tag]
        assert c <= 63, (tag, c)
        return f"s_waitcnt vmcnt({c})"

def gen(stamps=False, name=NAME + "_kernel", force_slow=False, SPIN=1 << 16, odepth=6, nomoe=False, noclr=False, hitA=False,
        lprio=1, owait=True, adeep=True, touch=True, clr_it=(2, 2, 3, 3, 4, 4, 4, 5, 5), rs_it=(1, 3, 6), id_it=8, eg_it=(11, 13),
        moe_it=(6, 6, 6, 7, 7, 7, 8, 8, 8, 9, 9, 9, 10, 10, 10, 10, 11, 11, 11, 12, 12, 12, 12, 12), wo92=13, vsel=56):
    A = Asm()
    SX, SW, SWS, SWO, SOUT, SG, SU, SD, SWR = 4, 8, 12, 16, 20, 24, 28, 32, 36
    sWave, sRole, sXc, sJ, sG, sM, sWm, sWh, sTag, sFast = 60, 61, 62, 63, 64, 65, 66, 67, 68, 69
    sT, sT1, sT2, sT3 = 70, 71, 72, 73
    sKA, sKB, sM0A, sM0B, sSpin, sMoe = 74, 75, 76, 77, 78, 79
    sEps, sOne = 80, 82
    sWsum, sK1, sK2, sB0, sB1, sLog = 84, 85, 86, 87, 88, 90
    sMask = 92
    sC0, sC1 = 94, 95
    SREG = [96, 98, 100] + list(range(40, 60, 2))
    WSR = f"s[{SWS}:{SWS+3}]"
    out_of_line = []
    stamp_n = {"C": 0, "L": 0}
    stamp_names = {"C": [], "L": []}
    SETS = {True: "Cstart Cloop Ckv CE2 CO COok CE3 CST CE4 Cout CE5 Cend Lstart LF LE1 LE2 LE3 LE5 Lmoe Lend",
            "ml": "Cstart C0 C1 C2 C3 C4 C6 C8 C10 C12 C14 Cloop Ckv L00 Lstart La Lb L1 L2 L3 L4 L6 L9 L12 L14 LF",
            "m2": "C7 Cb7 Ca7 C8 Cb8 Ca8 C9 Cb9 Ca9 C10 L6 Li7 Lw7 L7 Li8 Lw8 L8 Li9 Lw9 L9"}
    def stamp(role, nm):
        if stamps and role + nm in SETS[stamps].split():
            i = stamp_n[role]; stamp_n[role] += 1
            stamp_names[role].append(nm)
            A(f"{'s_memtime' if stamps == 'm2' else 's_memrealtime'} s[{SREG[i]}:{SREG[i]+1}]")
    def dump_stamps(role):
        if not stamps: return
        A("s_mov_b64 exec, 1\ns_waitcnt lgkmcnt(0)")
        A(f"s_lshl_b32 s{sT}, s2, 3\ns_lshl_b32 s{sT1}, s{sRole}, 2\ns_add_u32 s{sT}, s{sT}, s{sT1}\ns_add_u32 s{sT}, s{sT}, s{sWave}\ns_lshl_b32 s{sT}, s{sT}, 6\ns_add_u32 s{sT}, s{sT}, {WS_DBG}")
        A("v_mov_b32 v2, 0")
        for i in range(stamp_n[role]):
            A(f"v_mov_b32 v3, s{SREG[i]}\nbuffer_store_dword v3, v2, {WSR}, s{sT} offen offset:{4*i}")
        A(f"v_mov_b32 v3, s{sSpin}\nbuffer_store_dword v3, v2, {WSR}, s{sT} offen offset:60")
    def retry(check, reload, lname):
        A(f"{lname}_chk:")
        for x in check: A(x)
        A(f"s_cbranch_vccnz {lname}_rt\n{lname}_ok:")
        out_of_line.append(f"{lname}_rt:\ns_add_u32 s{sSpin}, s{sSpin}, 1\ns_cmp_gt_u32 s{sSpin}, {SPIN}\ns_cbranch_scc1 {lname}_ok\n" +
                           "\n".join(reload) + f"\ns_waitcnt vmcnt(0)\ns_branch {lname}_chk")
    def fast_slow(fn, lname):
        A(f"s_cmp_eq_u32 s{sFast}, 0\ns_cbranch_scc1 {lname}_s")
        for x in fn(""): A(x)
        A(f"{lname}_d:")
        out_of_line.append(f"{lname}_s:\n" + "\n".join(fn(" sc1")) + f"\ns_branch {lname}_d")

    hdr = open(os.path.join(os.path.dirname(os.path.abspath(__file__)), "..", NAME + ".s.ref")).read().split("\n")
    for l in hdr:
        if l.startswith("; @launch"): break
        A(l)
    A("; @launch grid=(256,1,1) block=(512,1,1) lds=163840")
    A('.amdgcn_target "amdgcn-amd-amdhsa--gfx950"\n.text')
    kernel_begin(A, name)
    A("s_cmp_ge_u32 s2, 256\ns_cbranch_scc1 L_end")
    A("s_load_dwordx16 s[40:55], s[0:1], 0\ns_load_dwordx2 s[56:57], s[0:1], 64\ns_load_dwordx2 s[58:59], s[0:1], 80")
    A(f"v_lshrrev_b32 v2, 6, v0\nv_and_b32 v1, 63, v0\nv_readfirstlane_b32 s{sWave}, v2")
    A(f"s_and_b32 s{sXc}, s2, 7\ns_lshr_b32 s{sJ}, s2, 3\ns_lshl_b32 s{sG}, s{sXc}, 1\ns_and_b32 s{sT}, s{sJ}, 1\ns_add_u32 s{sG}, s{sG}, s{sT}\ns_lshr_b32 s{sM}, s{sJ}, 1")
    A(f"s_lshl_b32 s{sMoe}, s{sG}, 4\ns_add_u32 s{sMoe}, s{sMoe}, s{sM}")
    A(f"s_mov_b32 s{sSpin}, 0")
    A(f"s_lshr_b32 s{sRole}, s{sWave}, 2\ns_and_b32 s{sWave}, s{sWave}, 3")
    A(f"s_lshr_b32 s{sWm}, s{sWave}, 1\ns_and_b32 s{sWh}, s{sWave}, 1")
    A(f"v_lshlrev_b32 v16, 4, v1")
    A(f"s_cmp_eq_u32 s{sRole}, 0\ns_cbranch_scc1 L_compute")

    vm = VM()
    vAld, vBld = 8, 12
    vL16 = 18
    stamp("L", "00")
    if lprio: A(f"s_setprio {lprio}")
    A(f"v_mov_b32 v{vL16}, v16")
    A(f"s_lshl_b32 s{sT}, s{sM}, 2\ns_add_u32 s{sT}, s{sT}, s{sWave}\ns_lshl_b32 s{sT}, s{sT}, 16")
    A(f"v_lshrrev_b32 v2, 3, v1\nv_lshlrev_b32 v5, 11, v2\nv_add_u32 v5, s{sT}, v5")
    A(f"v_lshrrev_b32 v3, 4, v1\nv_and_b32 v4, 7, v1\nv_xor_b32 v3, v3, v4")
    for j in range(4):
        A(f"v_xor_b32 v6, {4*(j&1)}, v3\nv_lshl_add_u32 v6, v6, 4, v5\nv_add_u32 v{vAld+j}, {j*8*2048 - 1024*j}, v6")
    A(f"s_lshl_b32 s{sT}, s{sWave}, 4\nv_add_u32 v5, s{sT}, v2\nv_mul_u32_u24 v5, 6144, v5\ns_lshl_b32 s{sT}, s{sG}, 7\nv_add_u32 v5, s{sT}, v5")
    A(f"v_bfe_u32 v3, v1, 4, 1\nv_lshlrev_b32 v3, 1, v3\nv_xor_b32 v3, v3, v4")
    for p in range(3):
        for u in range(2):
            idx = p*2 + u
            A(f"v_xor_b32 v6, {4*u}, v3\nv_lshl_add_u32 v6, v6, 4, v5\nv_add_u32 v{vBld+idx}, {p*2048 + u*8*6144 - 1024*(idx&3)}, v6")
    A(f"s_lshl_b32 s{sM0A}, s{sWave}, 12\ns_mul_i32 s{sM0B}, s{sWave}, 6144")
    A(f"s_mul_i32 s{sKB}, s{sM}, {64*6144}\ns_lshl_b32 s{sKA}, s{sM}, 7")
    A("s_waitcnt lgkmcnt(0)")
    srd(A, SX, 40, 41, 2048*1024*2)
    srd(A, SW, 42, 43, 1024*3072*2)
    def emit(it):
        x, n, tag = it
        if callable(x): x()
        else: A(x)
        if n: vm.issue(tag, n)
    def V(x): return [(l, 0, None) for l in x.split("\n")]
    def AT(x, n=0, tag=None): return [(x, n, tag)]
    def dmaA(st):
        L = []
        for j in range(4):
            pre = f"s_add_u32 m0, s{sM0A}, {LA[st % 4]}\n" if j == 0 else ""
            post = f"\ns_add_u32 s{sKA}, s{sKA}, 128\ns_and_b32 s{sKA}, s{sKA}, 2047" if j == 3 else ""
            L += AT(pre + f"buffer_load_dwordx4 v{vAld+j}, s[{SX}:{SX+3}], {0 if hitA else 's%d' % sKA} offen offset:{1024*j} lds" + post, 1, f"A{st}")
        return L
    def dmaB(st):
        L = []
        for idx in range(6):
            pre = f"s_add_u32 m0, s{sM0B}, {LB[st % 3] + (idx//4)*4096}\n" if idx % 4 == 0 else ""
            post = f"\ns_add_u32 s{sKB}, s{sKB}, {64*6144}\ns_cmp_eq_u32 s{sKB}, {1024*6144}\ns_cselect_b32 s{sKB}, 0, s{sKB}" if idx == 5 else ""
            L += AT(pre + f"buffer_load_dwordx4 v{vBld+idx}, s[{SW}:{SW+3}], s{sKB} offen offset:{1024*(idx&3)} lds" + post, 1, f"B{st}")
        return L
    for it in dmaA(0) + dmaB(0) + dmaA(1): emit(it)
    srd(A, SWS, 58, 59, 256 << 20)
    srd(A, SWO, 44, 45, 1024*1024*2)
    srd(A, SOUT, 56, 57, 2048*1024*2)
    srd(A, SG, 50, 51, 1024*3584*2)
    srd(A, SU, 52, 53, 1024*3584*2)
    srd(A, SD, 54, 55, 3584*1024*2)
    stamp("L", "start")
    vRow, vU, vWo, vNeg = 20, 36, 68, 72
    vGU, vWD, vT = 76, 77, 79
    sRow, sGU, sWD, sKv, sOo, sWoS = sB0, sK1, sK2, sEps, sEps + 1, sOne
    A(f"s_lshl_b32 s{sT}, s{sM}, 7\ns_lshl_b32 s{sT1}, s{sG}, 3\ns_add_u32 s{sT}, s{sT}, s{sT1}\ns_lshl_b32 s{sT1}, s{sWave}, 1\ns_add_u32 s{sRow}, s{sT}, s{sT1}")
    A(f"v_lshrrev_b32 v2, 3, v1\nv_lshlrev_b32 v3, 11, v2\nv_bfe_u32 v5, v1, 4, 2\nv_lshlrev_b32 v5, 1, v5\nv_and_b32 v4, 7, v1\nv_xor_b32 v5, v5, v4\nv_lshl_add_u32 v3, v5, 4, v3")
    A(f"s_lshl_b32 s{sT}, s{sM}, 7\nv_add_u32 v{vWo}, s{sT}, v3")
    for j in range(1, 4): A(f"v_add_u32 v{vWo+j}, {j*(16384-1024)}, v{vWo}")
    for e in range(4): A(f"v_mov_b32 v{vNeg+e}, -1")
    A(f"s_mul_i32 s{sKv}, s{sMoe}, {KVS}\ns_add_u32 s{sKv}, s{sKv}, {WS_KV}")
    A(f"s_lshl_b32 s{sOo}, s{sM}, 18\ns_lshl_b32 s{sT}, s{sWm}, 17\ns_add_u32 s{sOo}, s{sOo}, s{sT}\ns_lshl_b32 s{sT}, s{sG}, 11\ns_add_u32 s{sOo}, s{sOo}, s{sT}\ns_lshl_b32 s{sT}, s{sWh}, 10\ns_add_u32 s{sOo}, s{sOo}, s{sT}\ns_add_u32 s{sOo}, s{sOo}, {WS_O}")
    A(f"v_mul_u32_u24 v{vGU}, 7168, v2\nv_lshl_add_u32 v{vGU}, v4, 4, v{vGU}")
    A(f"v_lshrrev_b32 v2, 4, v1\nv_and_b32 v3, 15, v1\nv_lshlrev_b32 v{vWD}, 13, v2\nv_lshl_add_u32 v{vWD}, v3, 4, v{vWD}\nv_add_u32 v{vWD+1}, 4096, v{vWD}")
    A(f"s_and_b32 s{sT}, s{sM}, 3\ns_lshl_b32 s{sT}, s{sT}, 2\ns_add_u32 s{sT}, s{sT}, s{sWave}\ns_mul_i32 s{sGU}, s{sT}, {64*7168}\ns_lshr_b32 s{sT}, s{sMoe}, 2\ns_lshl_b32 s{sT}, s{sT}, 7\ns_add_u32 s{sGU}, s{sGU}, s{sT}")
    A(f"s_lshl_b32 s{sWD}, s{sMoe}, 15\ns_lshl_b32 s{sT}, s{sWave}, 9\ns_add_u32 s{sWD}, s{sWD}, s{sT}")
    A(f"s_cmp_lt_u32 s{sG}, 14\ns_cselect_b32 s{SG+2}, s{SG+2}, 0\ns_cselect_b32 s{SU+2}, s{SU+2}, 0\ns_cselect_b32 s{SD+2}, s{SD+2}, 0")
    A(f"s_lshl_b32 s{sT}, s{sMoe}, 10\ns_add_u32 s{sT}, s{sT}, {WS_CS}\nv_and_b32 v2, 7, v1\nv_lshlrev_b32 v2, 7, v2\nv_add_u32 v{vT}, s{sT}, v2")
    A(f"s_lshl_b32 s{sT}, s{sRow}, 4\ns_add_u32 s{sT}, s{sT}, {WS_RS}\nv_writelane_b32 v{vT}, s{sT}, 0\ns_lshl_b32 s{sT}, s{sMoe}, 4\ns_add_u32 s{sT}, s{sT}, {WS_IDR}\nv_writelane_b32 v{vT}, s{sT}, 1")
    A(f"s_lshl_b32 s{sT}, s{sG}, 7\ns_add_u32 s{sT}, s{sT}, {WS_REC}\nv_writelane_b32 v{vT}, s{sT}, 2")
    A(vm.wait("B0") + "\ns_barrier")
    stamp("L", "a")
    for it in dmaB(1) + dmaA(2) + dmaB(2) + (dmaA(3) if adeep else []): emit(it)
    A(vm.wait("B1") + "\ns_barrier")
    stamp("L", "b")
    side = {k: [] for k in range(1, 16)}
    extra = {k: [] for k in range(1, 16)}
    late = {k: [] for k in range(1, 16)}
    extra[rs_it[0]] += AT(f"v_mov_b32 v2, 0\nbuffer_load_dword v19, v2, {WSR}, 0 offen sc1", 1)
    for q in range(4): extra[rs_it[0]] += AT(f"s_lshl_b32 s{sT}, s{sRow}, 11\nbuffer_load_dwordx4 {vr(vRow+4*q, 4)}, v{vL16}, s[{SX}:{SX+3}], s{sT} offen offset:{1024*q}", 1, "rs")
    if touch: extra[rs_it[0]] += AT(f"s_mov_b64 exec, 0xff07\nbuffer_load_dword v80, v{vT}, {WSR}, 0 offen\ns_mov_b64 exec, -1", 1)
    def wave_sum2(a, b):
        L = []
        for k in (1, 2, 4, 8):
            L += V(f"v_add_f32_dpp v{a}, v{a}, v{a} row_ror:{k} row_mask:0xf bank_mask:0xf\nv_add_f32_dpp v{b}, v{b}, v{b} row_ror:{k} row_mask:0xf bank_mask:0xf")
        for sw in ("16", "32"):
            L += V(f"v_mov_b32 v6, v{a}\nv_mov_b32 v7, v{b}\nv_permlane{sw}_swap_b32 v{a}, v6\nv_permlane{sw}_swap_b32 v{b}, v7\nv_add_f32 v{a}, v{a}, v6\nv_add_f32 v{b}, v{b}, v7")
        return L
    R = AT(lambda: A(vm.wait("rs")))
    R += AT(f"v_readfirstlane_b32 s{sTag}, v19\ns_add_u32 s{sTag}, s{sTag}, 1")
    for q in range(16): R += V(f"v_lshlrev_b32 v{vU+2*q}, 16, v{vRow+q}\nv_and_b32 v{vU+2*q+1}, 0xffff0000, v{vRow+q}")
    for i in range(2):
        b = vU + 16*i; t = vRow + 8*i
        for q in range(4): R += V(f"v_pk_add_f32 {vr(t+2*q, 2)}, {vr(b+4*q, 2)}, {vr(b+4*q+2, 2)}")
        for q in range(2): R += V(f"v_pk_add_f32 {vr(t+4*q, 2)}, {vr(t+4*q, 2)}, {vr(t+4*q+2, 2)}")
        R += V(f"v_pk_add_f32 {vr(t, 2)}, {vr(t, 2)}, {vr(t+4, 2)}\nv_add_f32 v{2+2*i}, v{t}, v{t+1}")
    R += wave_sum2(2, 4)
    R += V(f"v_mul_f32 v2, {hex(f2u(-1.0/1024))}, v2\nv_mul_f32 v4, {hex(f2u(-1.0/1024))}, v4")
    for i in range(2):
        b = vU + 16*i; t = vRow + 8*i
        for q in range(8): R += V(f"v_pk_add_f32 {vr(b+2*q, 2)}, {vr(b+2*q, 2)}, {vr(2+2*i, 2)} op_sel_hi:[1,0]")
        for q in range(2): R += V(f"v_pk_mul_f32 {vr(t+2*q, 2)}, {vr(b+2*q, 2)}, {vr(b+2*q, 2)}")
        for q in range(2, 8): R += V(f"v_pk_fma_f32 {vr(t+2*(q&1), 2)}, {vr(b+2*q, 2)}, {vr(b+2*q, 2)}, {vr(t+2*(q&1), 2)}")
        R += V(f"v_pk_add_f32 {vr(t, 2)}, {vr(t, 2)}, {vr(t+2, 2)}\nv_add_f32 v{3+2*i}, v{t}, v{t+1}")
    R += wave_sum2(3, 5)
    R += V(f"v_mov_b32 v6, {hex(f2u(1e-5))}\nv_fmac_f32 v6, {hex(f2u(1.0/1024))}, v3\nv_rsq_f32 v3, v6\nv_mov_b32 v6, {hex(f2u(1e-5))}\nv_fmac_f32 v6, {hex(f2u(1.0/1024))}, v5\nv_rsq_f32 v5, v6")
    R += V(f"v_cmp_eq_u32 vcc, 1, v1\nv_cndmask_b32 v20, v2, v4, vcc\nv_cndmask_b32 v21, v3, v5, vcc\nv_mov_b32 v22, 0\nv_mov_b32 v23, s{sTag}")
    def spread(L, k0, k1):
        n = k1 - k0 + 1; per = -(-len(L) // n)
        for i in range(n): side[k0 + i] += L[i*per:(i+1)*per]
    spread(R, rs_it[1], rs_it[2])
    late[rs_it[2]] += AT(f"s_lshl_b32 s{sT}, s{sRow}, 4\ns_add_u32 s{sT}, s{sT}, {WS_RS}\ns_mov_b64 exec, 3\nbuffer_store_dwordx4 v[20:23], v{vL16}, {WSR}, s{sT} offen sc1\ns_mov_b64 exec, -1", 1)
    NG = vr(vNeg, 4)
    clears = [f"s_lshl_b32 s{sT}, s{sWave}, 10\ns_add_u32 s{sT}, s{sT}, s{sKv}\nbuffer_store_dwordx4 {NG}, v{vL16}, {WSR}, s{sT} offen sc1"]
    for rb in range(4): clears.append(f"s_add_u32 s{sT}, s{sOo}, {rb*32768}\nbuffer_store_dwordx4 {NG}, v{vL16}, {WSR}, s{sT} offen sc1")
    clears.append(f"s_lshl_b32 s{sT}, s{sWave}, 6\ns_add_u32 s{sT}, s{sT}, s{sKv}\ns_add_u32 s{sT}, s{sT}, 4096\ns_mov_b64 exec, 0xf\nbuffer_store_dwordx4 {NG}, v{vL16}, {WSR}, s{sT} offen sc1\ns_mov_b64 exec, -1")
    clears.append(f"s_lshl_b32 s{sT}, s{sG}, 12\ns_lshl_b32 s{sT1}, s{sWm}, 11\ns_add_u32 s{sT}, s{sT}, s{sT1}\ns_lshl_b32 s{sT1}, s{sM}, 7\ns_add_u32 s{sT}, s{sT}, s{sT1}\ns_lshl_b32 s{sT1}, s{sWh}, 6\ns_add_u32 s{sT}, s{sT}, s{sT1}\ns_add_u32 s{sT}, s{sT}, {WS_CSEG}\n"
                  f"s_mov_b64 exec, 0xf\nbuffer_store_dwordx4 {NG}, v{vL16}, {WSR}, s{sT} offen sc1\ns_mov_b64 exec, -1")
    for a in range(2):
        clears.append(f"s_lshl_b32 s{sT}, s{sMoe}, 13\ns_lshl_b32 s{sT1}, s{sWave}, 11\ns_add_u32 s{sT}, s{sT}, s{sT1}\ns_add_u32 s{sT}, s{sT}, {WS_YP}\nbuffer_store_dwordx4 {NG}, v{vL16}, {WSR}, s{sT} offen offset:{1024*a} sc1")
    if not noclr:
        for k, x in zip(clr_it, clears): extra[k] += AT(x, 1)
        assert id_it >= max(clr_it) + 3 and len(clr_it) == len(clears)
    assert id_it > rs_it[1]
    side[id_it] += AT(f"s_getreg_b32 s{sT1}, hwreg(HW_REG_XCC_ID, 0, 4)\nv_mov_b32 v84, s{sT1}") + V(f"v_mov_b32 v85, 0\nv_mov_b32 v86, 0\nv_mov_b32 v87, s{sTag}")
    late[id_it] += AT(f"s_lshl_b32 s{sT}, s{sMoe}, 4\ns_add_u32 s{sT}, s{sT}, {WS_IDR}\ns_mov_b64 exec, 1\nbuffer_store_dwordx4 v[84:87], v{vL16}, {WSR}, s{sT} offen sc1\ns_mov_b64 exec, -1", 1)
    vCS, vRG, vID = 20, 36, 40
    sCs, sRg = sB0, sB1
    assert eg_it[0] > rs_it[2]
    egl = [f"s_add_u32 s{sT}, s{sCs}, {j*4096}\nbuffer_load_dwordx4 {vr(vCS+4*j, 4)}, v44, {WSR}, s{sT} offen sc1" for j in range(4)]
    egl += [f"buffer_load_dwordx4 {vr(vRG, 4)}, v45, {WSR}, s{sRg} offen sc1", f"buffer_load_dwordx4 {vr(vID, 4)}, v46, {WSR}, 0 offen offset:0 sc1"]
    E = V(f"v_lshrrev_b32 v2, 4, v1\nv_and_b32 v3, 15, v1\nv_lshlrev_b32 v44, 10, v2\nv_lshl_add_u32 v44, v3, 4, v44") + AT(f"s_lshl_b32 s{sT}, s{sWave}, 8\nv_add_u32 v44, s{sT}, v44")
    E += AT(f"s_lshl_b32 s{sCs}, s{sG}, 14\ns_add_u32 s{sCs}, s{sCs}, {WS_CS}") + V(f"v_and_b32 v45, 31, v1\nv_lshlrev_b32 v45, 4, v45")
    E += AT(f"s_lshl_b32 s{sRg}, s{sM}, 11\ns_lshl_b32 s{sT}, s{sWave}, 9\ns_add_u32 s{sRg}, s{sRg}, s{sT}\ns_add_u32 s{sRg}, s{sRg}, {WS_RS}")
    E += AT(f"s_lshl_b32 s{sT}, s{sG}, 8\ns_add_u32 s{sT}, s{sT}, {WS_IDR}\nv_lshlrev_b32 v4, 4, v3\nv_add_u32 v4, s{sT}, v4")
    E += AT(f"s_lshl_b32 s{sT}, s{sG}, 4\ns_add_u32 s{sT}, s{sT}, {WS_IDR}\nv_lshlrev_b32 v5, 8, v3\nv_add_u32 v5, s{sT}, v5")
    E += V(f"v_and_b32 v6, 1, v2\nv_cmp_eq_u32 vcc, 1, v6\nv_cndmask_b32 v46, v4, v5, vcc")
    side[eg_it[0]] += E
    for x in egl: extra[eg_it[0]] += AT(x, 1, "eg")
    chk = [f"v_xor_b32 v2, s{sTag}, v{vCS+3}", f"v_xor_b32 v3, s{sTag}, v{vCS+7}", f"v_xor_b32 v4, s{sTag}, v{vCS+11}",
           f"v_or3_b32 v2, v2, v3, v4", f"v_xor_b32 v3, s{sTag}, v{vCS+15}", f"v_xor_b32 v4, s{sTag}, v{vRG+3}",
           f"v_or3_b32 v2, v2, v3, v4", f"v_xor_b32 v3, s{sTag}, v{vID+3}", f"v_or_b32 v2, v2, v3", "v_cmp_ne_u32 vcc, 0, v2"]
    def egchk(): A(vm.wait("eg")); retry(chk, egl, "L_eg")
    E = AT(egchk)
    for e in range(3): E += V(f"v_add_f32 v{vCS+e}, v{vCS+e}, v{vCS+4+e}\nv_add_f32 v{vCS+8+e}, v{vCS+8+e}, v{vCS+12+e}")
    for e in range(3): E += V(f"v_add_f32 v{vCS+e}, v{vCS+e}, v{vCS+8+e}")
    for sw in ("16", "32"):
        for e in range(3): E += V(f"v_mov_b32 v{vCS+4+e}, v{vCS+e}")
        for e in range(3): E += V(f"v_permlane{sw}_swap_b32 v{vCS+e}, v{vCS+4+e}")
        for e in range(3): E += V(f"v_add_f32 v{vCS+e}, v{vCS+e}, v{vCS+4+e}")
    E += V(f"v_and_b32 v3, 15, v1\nv_lshlrev_b32 v3, 2, v3") + AT(f"s_lshl_b32 s{sT}, s{sWave}, 6\ns_add_u32 s{sT}, s{sT}, {L_CSUM}\nv_add_u32 v3, s{sT}, v3")
    for e in range(3): E += V(f"ds_write_b32 v3, v{vCS+e} offset:{256*e}")
    E += V(f"v_lshrrev_b32 v4, 2, v45") + AT(f"s_lshl_b32 s{sT}, s{sWave}, 7\ns_add_u32 s{sT}, s{sT}, {L_NM}\nv_add_u32 v4, s{sT}, v4")
    E += V(f"ds_write_b32 v4, v{vRG}\nds_write_b32 v4, v{vRG+1} offset:512")
    E += AT(f"s_getreg_b32 s{sT1}, hwreg(HW_REG_XCC_ID, 0, 4)\nv_cmp_ne_u32 vcc, s{sT1}, v{vID}\ns_and_b32 s{sT}, vcc_lo, 0xffff\ns_cselect_b32 s{sFast}, 0, {0 if force_slow else 1}")
    E += V(f"v_mov_b32 v5, s{sFast}\nv_mov_b32 v6, {L_FAST}\nds_write_b32 v6, v5")
    spread(E, eg_it[1], 14)
    moe = []
    for i in range(8):
        for mat in range(2):
            srdx = SU if mat else SG
            moe.append(f"buffer_load_dwordx4 {ar(mat*32 + i*4, 4)}, v{vGU}, s[{srdx}:{srdx+3}], s{sGU} offen" + (f"\ns_add_u32 s{sGU}, s{sGU}, {8*7168}" if mat else ""))
    for a in range(2):
        for jj in range(4): moe.append(f"buffer_load_dwordx4 {ar(64 + a*16 + jj*4, 4)}, v{vWD + (jj >> 1)}, s[{SD}:{SD+3}], s{sWD} offen offset:{(jj & 1)*2048 + a*256}")
    moe_post = {}
    assert len(moe_it) == 24 and list(moe_it) == sorted(moe_it)
    for k, x in zip(moe_it, moe):
        if nomoe: continue
        if k <= 15: extra[k] += AT(x, 1)
        else: moe_post.setdefault(k, []).append(x)
    def moe_loads(k):
        for x in moe_post.get(k, []): emit((x, 1, None))
    def wo_piece(q0, n):
        L = []
        for i in range(n):
            pre = ""
            if i == 0: pre = f"s_mul_i32 s{sT}, s{sWave}, {n}\ns_add_u32 s{sT}, s{sT}, {q0}\ns_lshl_b32 s{sWoS}, s{sT}, 14\ns_lshl_b32 s{sT}, s{sT}, 10\ns_add_u32 m0, s{sT}, {L_WO}\n"
            elif i % 4 == 0: pre = f"s_add_u32 m0, m0, 4096\ns_add_u32 s{sWoS}, s{sWoS}, 65536\n"
            L += AT(pre + f"buffer_load_dwordx4 v{vWo+(i&3)}, s[{SWO}:{SWO+3}], s{sWoS} offen offset:{1024*(i&3)} lds", 1)
        return L
    for st in range(1, 16):
        ops = []
        if not adeep and st + 2 < 16: ops += dmaA(st + 2)
        if st + 2 < 16: ops += dmaB(st + 2)
        if adeep and st + 3 < 16: ops += dmaA(st + 3)
        if st == wo92: ops += wo_piece(92, 9)
        if st == 14: ops += wo_piece(52, 10)
        if st == 15: ops += wo_piece(12, 10)
        sd = side[st]; per = -(-len(sd) // len(ops))
        for i, o in enumerate(ops):
            emit(o)
            for x in sd[i*per:(i+1)*per]: emit(x)
        for x in extra[st] + late[st]: emit(x)
        if st == 15: break
        stamp("L", f"i{st}")
        A(vm.wait(f"B{st+1}"))
        stamp("L", f"w{st}")
        A("s_barrier")
        stamp("L", str(st))
    if lprio: A("s_setprio 0")
    A("s_waitcnt lgkmcnt(0)\ns_barrier")
    stamp("L", "F")
    for x in wo_piece(0, 3): emit(x)
    A(f"s_sub_i32 s{sT}, s{sG}, s{sM}\ns_lshl_b32 s{sT}, s{sT}, 18")
    for j in range(4): A(f"v_add_u32 v{vAld+j}, s{sT}, v{vAld+j}")
    A(f"s_lshl_b32 s{sT}, s{sM}, 7\ns_mov_b32 m0, s{sM0A}")
    for j in range(4): emit((f"buffer_load_dwordx4 v{vAld+j}, s[{SX}:{SX+3}], s{sT} offen offset:{1024*j} lds", 1, None))
    if wo92 == 16:
        for x in wo_piece(92, 9): emit(x)
    vSel = vsel
    A(f"v_lshrrev_b32 v2, 4, v1\nv_bfe_u32 v3, v1, 2, 2\nv_and_b32 v4, 1, v1\nv_lshlrev_b32 v4, 4, v4\nv_mov_b32 v5, 0x3f80\nv_lshlrev_b32 v4, v4, v5")
    A(f"v_cmp_eq_u32 vcc, v2, v3\nv_cndmask_b32 v4, 0, v4, vcc\nv_and_b32 v5, 2, v1\nv_cmp_eq_u32 vcc, 0, v5")
    A(f"v_cndmask_b32 v{vSel+2}, 0, v4, vcc\nv_cndmask_b32 v{vSel+3}, v4, 0, vcc" if False else
      f"v_cndmask_b32 v{vSel+2}, 0, v4, vcc\nv_cndmask_b32_e64 v{vSel+3}, v4, 0, vcc")
    A(f"v_mov_b32 v{vSel}, 0\nv_mov_b32 v{vSel+1}, 0\nv_mov_b32 v{vSel+4}, 0\nv_mov_b32 v{vSel+5}, 0")
    moe_loads(16)
    vP, vZ, vZa = 84, 148, 55
    A(f"v_and_b32 v3, 15, v1\nv_mul_u32_u24 v{vZa}, {KVS}, v3\nv_lshrrev_b32 v2, 4, v1\nv_lshl_add_u32 v{vZa}, v2, 5, v{vZa}")
    A(f"s_mul_i32 s{sB0}, s{sG}, {16*KVS}\ns_add_u32 s{sB0}, s{sB0}, {WS_KV}")
    A(f"s_lshl_b32 s{sT}, s{sWm}, 7\ns_lshl_b32 s{sT1}, s{sWh}, 4\ns_add_u32 s{sB1}, s{sT}, s{sT1}\ns_add_u32 s{sB1}, s{sB1}, s{sB0}\ns_add_u32 s{sB1}, s{sB1}, 4096")
    A(f"s_lshl_b32 s{sT}, s{sWave}, 10\ns_add_u32 s{sB0}, s{sB0}, s{sT}")
    def kv_load(i):
        return [f"s_add_u32 s{sT}, s{sM}, {i+1}\ns_and_b32 s{sT}, s{sT}, 15\ns_mul_i32 s{sT}, s{sT}, {KVS}\ns_add_u32 s{sT}, s{sT}, s{sB0}",
                f"buffer_load_dwordx4 {vr(vP+4*i, 4)}, v{vL16}, {WSR}, s{sT} offen sc1"]
    z_load = [f"buffer_load_dwordx4 {vr(vZ, 4)}, v{vZa}, {WSR}, s{sB1} offen sc1"]
    A("s_barrier")
    stamp("L", "E1")
    for i in range(16):
        for x in kv_load(i): A(x)
        vm.issue(f"kv{i}")
    for x in z_load: A(x)
    vm.issue("z")
    vD = 68
    for c in range(4):
        A(vm.wait(f"kv{4*c+3}"))
        r = [vP + 16*c + 4*i for i in range(4)]
        retry([f"v_max3_u32 v2, v{r[0]}, v{r[1]}, v{r[2]}", f"v_max_u32 v2, v2, v{r[3]}", f"v_cmp_eq_u32 vcc, -1, v2"],
              sum([kv_load(4*c+i) for i in range(4)], []), f"L_kv{c}")
        for i in range(4):
            first = c == 0 and i == 0
            A(f"v_mfma_f32_16x16x32_bf16 {vr(vD, 4)}, {vr(vSel+2, 4)}, {vr(r[i], 4)}, {0 if first else vr(vD, 4)}")
            A(f"v_mfma_f32_16x16x32_bf16 {vr(vD+4, 4)}, {vr(vSel, 4)}, {vr(r[i], 4)}, {0 if first else vr(vD+4, 4)}")
    A(vm.wait("z"))
    retry([f"v_cmp_eq_u32 vcc, -1, v{vZ}"], z_load, "L_z")
    for k in (1, 2, 4, 8):
        for e in range(4): A(f"v_add_f32_dpp v{vZ+e}, v{vZ+e}, v{vZ+e} row_ror:{k} row_mask:0xf bank_mask:0xf")
    A(f"v_cvt_pk_bf16_f32 v{vZ}, v{vZ}, v{vZ+1}\nv_cvt_pk_bf16_f32 v{vZ+1}, v{vZ+2}, v{vZ+3}")
    A(f"s_lshl_b32 s{sT}, s{sWm}, 6\ns_lshl_b32 s{sT1}, s{sWh}, 3\ns_add_u32 s{sT}, s{sT}, s{sT1}\ns_add_u32 s{sT}, s{sT}, {L_ZF}\nv_lshrrev_b32 v2, 4, v1\nv_lshlrev_b32 v2, 4, v2\nv_add_u32 v2, s{sT}, v2")
    A(f"ds_write_b64 v2, {vr(vZ, 2)}")
    for e in range(4): A(f"v_cvt_pk_bf16_f32 v{vD+e}, v{vD+2*e}, v{vD+2*e+1}")
    A(f"s_lshl_b32 s{sT}, s{sWave}, 10\ns_add_u32 s{sT}, s{sT}, {L_KVF}\nv_add_u32 v3, s{sT}, v{vL16}\nds_write_b128 v3, {vr(vD, 4)}")
    A("s_waitcnt lgkmcnt(0)\ns_barrier")
    stamp("L", "E2")
    moe_loads(17)
    A("s_barrier")
    stamp("L", "E3")
    moe_loads(18)
    vCg = 68
    vOne = 76
    vWDr, vWDf = 84, 116
    A(f"s_cmp_ge_u32 s{sG}, 14\ns_cbranch_scc1 L_noprep0")
    A(f"v_lshrrev_b32 v2, 5, v1\nv_lshlrev_b32 v2, 11, v2\nv_bfe_u32 v3, v1, 3, 2\nv_lshl_add_u32 v2, v3, 7, v2\nv_bfe_u32 v3, v1, 4, 1\nv_bfe_u32 v4, v1, 1, 2\nv_xor_b32 v3, v3, v4")
    A(f"v_lshl_add_u32 v2, v3, 5, v2\nv_and_b32 v3, 1, v1\nv_lshl_add_u32 v2, v3, 4, v2\ns_lshl_b32 s{sT}, s{sWave}, 13\ns_add_u32 s{sT}, s{sT}, {L_MOE}\nv_add_u32 v2, s{sT}, v2\nv_xor_b32 v3, 64, v2")
    A(f"s_mov_b32 s{sC0}, 0x05040100\ns_mov_b32 s{sC1}, 0x07060302")
    A("s_waitcnt vmcnt(0)")
    for mat in range(2):
        for i in range(8): A(f"ds_write_b128 v{2 + (i & 1)}, {ar(mat*32 + i*4, 4)} offset:{mat*32768 + (i >> 2)*4096 + (i & 3)*512}")
    for q in range(32): A(f"v_accvgpr_read_b32 v{vWDr+q}, a{64+q}")
    for a in range(2):
        for e in range(8):
            for h in range(2):
                A(f"v_perm_b32 v{vWDf + a*16 + e*2 + h}, v{vWDr + a*16 + (2*h+1)*4 + (e >> 1)}, v{vWDr + a*16 + 2*h*4 + (e >> 1)}, s{sC1 if e & 1 else sC0}")
    A("s_waitcnt lgkmcnt(0)\nL_noprep0:")
    A("s_barrier")
    A(f"s_cmp_ge_u32 s{sG}, 14\ns_cbranch_scc1 L_noprep")
    A(f"v_lshrrev_b32 v2, 2, v1\nv_bfe_u32 v3, v1, 3, 2\nv_xor_b32 v3, s{sWave}, v3\nv_lshlrev_b32 v3, 5, v3\nv_lshl_add_u32 v3, v2, 7, v3\nv_and_b32 v2, 3, v1\nv_lshl_add_u32 v3, v2, 3, v3\nv_add_u32 v3, {L_MOE}, v3")
    for ks in range(8):
        for mat in range(2):
            for t in range(2): A(f"ds_read_b64_tr_b16 {ar(mat*32 + ks*4 + 2*t, 2)}, v3 offset:{mat*32768 + ks*4096 + t*2048}")
    for e in range(4): A(f"v_mov_b32 v{vOne+e}, 0x3f803f80")
    A("s_waitcnt lgkmcnt(0)")
    for ks in range(8):
        for mat in range(2):
            A(f"v_mfma_f32_16x16x32_bf16 {vr(vCg+4*mat, 4)}, {ar(mat*32+ks*4, 4)}, {vr(vOne, 4)}, {0 if ks == 0 else vr(vCg+4*mat, 4)}")
    A("L_noprep:")
    sPxW, sPxR = sK1, sK2
    A(f"v_and_b32 v2, 1, v1\nv_lshlrev_b32 v56, 4, v2\nv_add_u32 v56, {L_PICK}, v56")
    A(f"v_lshrrev_b32 v3, 4, v1\nv_lshlrev_b32 v57, 4, v3\ns_and_b32 s{sT1}, s{sM}, 3\ns_lshl_b32 s{sT}, s{sT1}, 9\ns_add_u32 s{sT}, s{sT}, {WS_CSEG}\nv_add_u32 v57, s{sT}, v57")
    A(f"v_and_b32 v58, 3, v1\nv_lshlrev_b32 v58, 6, v58\nv_lshl_add_u32 v58, v3, 4, v58")
    A(f"s_sub_u32 s{sPxW}, s{sMoe}, s{sT1}\ns_add_u32 s{sPxW}, s{sPxW}, s{sWave}\ns_lshl_b32 s{sPxW}, s{sPxW}, 10\ns_lshl_b32 s{sT1}, s{sT1}, 8\ns_add_u32 s{sPxW}, s{sPxW}, s{sT1}\ns_add_u32 s{sPxW}, s{sPxW}, {WS_PX}")
    A(f"s_lshl_b32 s{sPxR}, s{sMoe}, 10\ns_add_u32 s{sPxR}, s{sPxR}, {WS_PX}")
    A(f"v_bfe_u32 v60, v1, 1, 3\nv_mov_b32 v59, s{sTag}\ns_movk_i32 s{sC0}, 0xff")
    A("s_barrier")
    stamp("L", "E5")
    vPk = 20
    vX = 24
    A(f"ds_read_b128 {vr(vPk, 4)}, v56")
    A(f"s_mov_b32 s{sMask}, 0x00030003\ns_mov_b32 s{sMask+1}, 0x00030003")
    vH, vYa, vN = 61, 62, 63
    A(f"s_sub_u32 s{sB1}, s{sJ}, 24\ns_lshl_b32 s{sT}, s{sXc}, 3\ns_add_u32 s{sB1}, s{sB1}, s{sT}")
    A(f"s_waitcnt lgkmcnt(0)")
    A(f"s_cmp_ge_u32 s{sG}, 14\ns_cbranch_scc1 L_nomoe")
    A(f"v_lshl_add_u32 v57, v{vPk+3}, 11, v57\ns_mov_b64 exec, s[{sMask}:{sMask+1}]")
    xl = [f"buffer_load_dwordx4 {vr(vX+4*ks, 4)}, v57, {WSR}, 0 offen offset:{64*ks} sc1" for ks in range(8)]
    for x in xl: A(x)
    for e in range(8): A(f"v_mul_f32_e64 v{vCg+e}, v{vCg+e}, -v{vPk+1}")
    A("s_waitcnt vmcnt(0)")
    retry([f"v_max3_u32 v2, v{vX}, v{vX+4}, v{vX+8}", f"v_max3_u32 v3, v{vX+12}, v{vX+16}, v{vX+20}", f"v_max3_u32 v2, v2, v{vX+24}, v{vX+28}",
           f"v_max_u32 v2, v2, v3", f"v_cmp_eq_u32 vcc, -1, v2"], xl, "L_x")
    A("s_mov_b64 exec, -1")
    for ks in range(8):
        for mat in range(2):
            A(f"v_mfma_f32_16x16x32_bf16 {vr(vCg+4*mat, 4)}, {ar(mat*32+ks*4, 4)}, {vr(vX+4*ks, 4)}, {vr(vCg+4*mat, 4)}")
    for e in range(8): A(f"v_bfi_b32 v{vCg+e}, s{sC0}, v59, v{vCg+e}")
    A(f"s_mov_b64 exec, s[{sMask}:{sMask+1}]")
    fast_slow(lambda f: [f"buffer_store_dwordx4 {vr(vCg+4*mat, 4)}, v58, {WSR}, s{sPxW} offen offset:{128*mat}{f}" for mat in range(2)], "L_pxp")
    A("s_mov_b64 exec, -1")
    pxl = [f"buffer_load_dwordx4 {vr(vX+4*q, 4)}, v58, {WSR}, s{sPxR} offen offset:{256*q} sc1" for q in range(4)]
    for x in pxl: A(x)
    A("s_waitcnt vmcnt(0)")
    chk = [f"v_xor_b32 v{vX+16+q}, v59, v{vX+q}" for q in range(16)]
    chk += [f"v_or3_b32 v{vX+16+3*q}, v{vX+16+3*q}, v{vX+17+3*q}, v{vX+18+3*q}" for q in range(5)]
    chk += [f"v_or3_b32 v2, v{vX+16}, v{vX+19}, v{vX+22}", f"v_or3_b32 v3, v{vX+25}, v{vX+28}, v{vX+31}", "v_or_b32 v2, v2, v3", "v_and_b32 v2, 0xff, v2", "v_cmp_ne_u32 vcc, 0, v2"]
    retry(chk, pxl, "L_px")
    g0, t0 = vX, vX + 4
    for h in range(2): A(f"v_pk_add_f32 {vr(g0+2*h, 2)}, {vr(g0+2*h, 2)}, {vr(g0+4+2*h, 2)}\nv_pk_add_f32 {vr(g0+8+2*h, 2)}, {vr(g0+8+2*h, 2)}, {vr(g0+12+2*h, 2)}")
    for h in range(2): A(f"v_pk_add_f32 {vr(g0+2*h, 2)}, {vr(g0+2*h, 2)}, {vr(g0+8+2*h, 2)}")
    for h in range(2): A(f"v_pk_mul_f32 {vr(g0+2*h, 2)}, {vr(g0+2*h, 2)}, {vr(vPk+2, 2)} op_sel_hi:[1,0]")
    for e in range(4): A(f"v_mul_f32 v{t0+e}, {hex(f2u(-LOG2E))}, v{g0+e}")
    for e in range(4): A(f"v_exp_f32 v{t0+e}, v{t0+e}")
    for e in range(4): A(f"v_mul_f32_dpp v{t0+4+e}, v{g0+e}, v{g0+e} quad_perm:[2,3,0,1] row_mask:0xf bank_mask:0xf")
    for e in range(4): A(f"v_add_f32 v{t0+e}, 1.0, v{t0+e}")
    for e in range(4): A(f"v_rcp_f32 v{t0+e}, v{t0+e}")
    for e in range(4): A(f"v_mul_f32 v{g0+e}, v{t0+4+e}, v{t0+e}")
    A(f"v_cvt_pk_bf16_f32 v{t0}, v{g0}, v{g0+1}\nv_cvt_pk_bf16_f32 v{t0+1}, v{g0+2}, v{g0+3}")
    A(f"v_mov_b32_dpp v{g0}, v{t0} quad_perm:[0,1,0,1] row_mask:0xf bank_mask:0xf\nv_mov_b32_dpp v{g0+1}, v{t0+1} quad_perm:[0,1,0,1] row_mask:0xf bank_mask:0xf")
    vB = vX + 8
    for e in range(8):
        A(f"v_cmp_eq_u32 vcc, {e}, v60\nv_cndmask_b32 v{vB+2*e}, 0, v{g0}, vcc\nv_cndmask_b32 v{vB+2*e+1}, 0, v{g0+1}, vcc")
    for q in range(4):
        for a in range(2):
            A(f"v_mfma_f32_16x16x32_bf16 {vr(vCg+4*a, 4)}, {vr(vWDf + a*16 + q*4, 4)}, {vr(vB+4*q, 4)}, {0 if q == 0 else vr(vCg+4*a, 4)}")
    A(f"s_lshl_b32 s{sT}, s{sMoe}, 13\ns_lshl_b32 s{sT1}, s{sWave}, 11\ns_add_u32 s{sT}, s{sT}, s{sT1}\ns_add_u32 s{sT}, s{sT}, {WS_YP}")
    for a in range(2): A(f"buffer_store_dwordx4 {vr(vCg+4*a, 4)}, v{vL16}, {WSR}, s{sT} offen offset:{1024*a} sc1")
    A("L_nomoe:")
    stamp("L", "moe")
    A(f"s_cmp_lt_u32 s{sJ}, 24\ns_cbranch_scc1 L_ldone")
    A(f"v_lshrrev_b32 v2, 3, v1\nv_and_b32 v3, 7, v1\nv_lshlrev_b32 v{vYa}, 13, v2\nv_lshl_add_u32 v{vYa}, v3, 4, v{vYa}")
    A(f"s_mul_i32 s{sB0}, s{sWave}, {56*8192}\ns_lshl_b32 s{sT}, s{sB1}, 7\ns_add_u32 s{sB0}, s{sB0}, s{sT}\ns_add_u32 s{sB0}, s{sB0}, {WS_YP}")
    yl = [f"s_add_u32 s{sT}, s{sB0}, {q*65536}\nbuffer_load_dwordx4 {vr(vX+4*q, 4)}, v{vYa}, {WSR}, s{sT} offen sc1" for q in range(7)]
    A(f"s_lshr_b32 s{sT}, s{sB1}, 1\ns_lshl_b32 s{sT}, s{sT}, 5\ns_and_b32 s{sT1}, s{sB1}, 1\ns_lshl_b32 s{sT1}, s{sT1}, 2\ns_add_u32 s{sT}, s{sT}, s{sT1}")
    A(f"v_bfe_u32 v4, v1, 3, 2\nv_lshlrev_b32 v4, 3, v4\nv_bfe_u32 v5, v1, 1, 2\nv_add3_u32 v{vN}, v4, v5, s{sT}\nv_lshlrev_b32 v{vN}, 1, v{vN}")
    A(f"v_lshl_add_u32 v64, v{vPk+3}, 11, v{vN}\ns_mov_b32 s{sT2}, {WS_CSEG}")
    hl = [f"buffer_load_ushort v{vH}, v64, {WSR}, s{sT2} offen sc1"]
    for x in hl + yl: A(x)
    A(f"v_and_b32 v65, 0xfffff800, v{vPk}\nv_not_b32 v4, v65\nv_ashrrev_i32 v4, 31, v4\nv_or_b32 v4, 0x80000000, v4\nv_xor_b32 v65, v65, v4")
    A(f"v_mul_f32 v65, {hex(f2u(-LOG2E))}, v65\nv_exp_f32 v65, v65\nv_add_f32 v65, 1.0, v65\nv_rcp_f32 v65, v65")
    A(f"v_and_b32 v66, 0x7ff, v{vPk}\nv_sub_u32 v66, 2047, v66\nv_lshl_add_u32 v66, v66, 11, v{vN}")
    A(f"v_add_f32 v67, 1.0, v{vPk+2}\nv_mul_f32_e64 v{vPk+1}, -v{vPk+1}, v{vPk+2}")
    A(f"s_lshl_b32 s{sT1}, s{sWave}, 7\ns_add_u32 s{sT1}, s{sT1}, {L_FIN}\nv_lshlrev_b32 v6, 4, v3\nv_add_u32 v6, s{sT1}, v6")
    A(f"v_bfe_u32 v4, v1, 3, 2\nv_lshlrev_b32 v7, 4, v3\nv_lshl_add_u32 v7, v4, 2, v7\nv_add_u32 v7, {L_FIN}, v7")
    A("s_waitcnt vmcnt(0)")
    retry([f"v_max3_u32 v2, v{vX}, v{vX+4}, v{vX+8}", f"v_max3_u32 v4, v{vX+12}, v{vX+16}, v{vX+20}", f"v_max3_u32 v2, v2, v4, v{vX+24}",
           f"v_or_b32 v4, 0xffff0000, v{vH}", f"v_max_u32 v2, v2, v4", f"v_cmp_eq_u32 vcc, -1, v2"], hl + yl, "L_y")
    for (d, s_) in ((0, 1), (2, 3), (4, 5), (0, 2), (4, 6), (0, 4)):
        for h in range(2): A(f"v_pk_add_f32 {vr(vX+4*d+2*h, 2)}, {vr(vX+4*d+2*h, 2)}, {vr(vX+4*s_+2*h, 2)}")
    for e in range(4): A(f"v_add_f32_dpp v{vX+e}, v{vX+e}, v{vX+e} row_ror:8 row_mask:0xf bank_mask:0xf")
    for sw in ("16", "32"):
        for e in range(4): A(f"v_mov_b32 v{vX+4+e}, v{vX+e}")
        for e in range(4): A(f"v_permlane{sw}_swap_b32 v{vX+e}, v{vX+4+e}")
        for e in range(4): A(f"v_add_f32 v{vX+e}, v{vX+e}, v{vX+4+e}")
    A(f"ds_write_b128 v6, {vr(vX, 4)}\ns_waitcnt lgkmcnt(0)\ns_barrier")
    A(f"s_cmp_lg_u32 s{sWave}, 0\ns_cbranch_scc1 L_ldone")
    for w in range(4): A(f"ds_read_b32 v{vX+w}, v7 offset:{128*w}")
    A(f"v_lshlrev_b32 v{vH}, 16, v{vH}\nv_fma_f32 v{vH}, v{vH}, v67, v{vPk+1}")
    A(f"s_waitcnt lgkmcnt(0)\nv_add_f32 v{vX}, v{vX}, v{vX+1}\nv_add_f32 v{vX+2}, v{vX+2}, v{vX+3}\nv_add_f32 v{vX}, v{vX}, v{vX+2}")
    A(f"v_fmac_f32 v{vH}, v{vX}, v65\nv_cvt_pk_bf16_f32 v{vH}, v{vH}, v{vH}\ns_mov_b64 exec, 0xffffffff")
    A(f"buffer_store_short v{vH}, v66, s[{SOUT}:{SOUT+3}], 0 offen sc1")
    A("L_ldone:")
    stamp("L", "end")
    dump_stamps("L")
    A("s_endpgm")

    A("L_compute:")
    vm = VM()
    vL16 = 16
    vAr, vBr = 8, 12
    ACC = 32
    FA, FB, aOne = 0, 32, 80
    WIN = 65536
    def T(rb, c): return ACC + (rb*6 + c)*4
    A(f"v_and_b32 v2, 15, v1\nv_lshrrev_b32 v4, 4, v1\nv_lshrrev_b32 v3, 1, v2\nv_xor_b32 v3, v3, v4\nv_lshlrev_b32 v2, 7, v2")
    A(f"s_lshl_b32 s{sT}, s{sWm}, 13\nv_add_u32 v2, s{sT}, v2")
    for s in range(2):
        A(f"v_xor_b32 v5, {4*s}, v3\nv_lshl_add_u32 v{vAr+s}, v5, 4, v2\nv_add_u32 v{vAr+2+s}, {WIN}, v{vAr+s}")
    A(f"v_lshrrev_b32 v2, 5, v1\nv_mul_u32_u24 v2, 6144, v2\nv_bfe_u32 v3, v1, 4, 1\nv_lshl_add_u32 v2, v3, 10, v2")
    A(f"v_bfe_u32 v4, v1, 2, 2\nv_lshl_add_u32 v2, v4, 7, v2\nv_lshlrev_b32 v3, 1, v3\nv_bfe_u32 v4, v1, 3, 1\nv_or_b32 v3, v3, v4")
    A(f"s_lshl_b32 s{sT}, s{sWh}, 1\nv_xor_b32 v3, s{sT}, v3\nv_and_b32 v4, 3, v1\nv_lshl_add_u32 v2, v4, 3, v2")
    for cb in range(2):
        A(f"v_xor_b32 v4, {cb}, v3\nv_lshl_add_u32 v{vBr+cb}, v4, 5, v2\nv_add_u32 v{vBr+2+cb}, {WIN}, v{vBr+cb}")
    A("s_waitcnt lgkmcnt(0)")
    srd(A, SWS, 58, 59, 256 << 20)
    srd(A, SWR, 48, 49, 2048)
    srd(A, SOUT, 56, 57, 2048*1024*2)
    stamp("C", "start")
    A(f"s_lshl_b32 s{sB0}, s{sG}, 4\ns_add_u32 s{sB0}, s{sB0}, s{sM}\ns_mul_i32 s{sB0}, s{sB0}, {KVS}\ns_add_u32 s{sB0}, s{sB0}, {WS_KV}")
    A(f"s_lshl_b32 s{sB1}, s{sM}, 18\ns_lshl_b32 s{sT}, s{sWm}, 17\ns_add_u32 s{sB1}, s{sB1}, s{sT}\ns_lshl_b32 s{sT}, s{sG}, 11\ns_add_u32 s{sB1}, s{sB1}, s{sT}\ns_lshl_b32 s{sT}, s{sWh}, 10\ns_add_u32 s{sB1}, s{sB1}, s{sT}\ns_add_u32 s{sB1}, s{sB1}, {WS_O}")
    A(f"v_mov_b32 v2, 0\nbuffer_load_dword v19, v2, {WSR}, 0 offen sc1")
    A(f"buffer_load_dwordx4 v[24:27], v{vL16}, s[{SWR}:{SWR+3}], 0 offen\nbuffer_load_dwordx4 v[28:31], v{vL16}, s[{SWR}:{SWR+3}], 0 offen offset:1024")
    A(f"v_lshrrev_b32 v3, 4, v1\nv_lshlrev_b32 v3, 3, v3\ns_lshl_b32 s{sT}, s{sM}, 7")
    for c in range(4): A(f"buffer_load_dwordx2 {ar(96+2*c, 2)}, v3, s[{SWR}:{SWR+3}], s{sT} offen offset:{32*c}")
    for i in range(96): A(f"v_mov_b32 v{ACC+i}, 0")
    A(f"s_mov_b32 s{sT}, 0x3f803f80")
    for e in range(4): A(f"v_accvgpr_write_b32 a{aOne+e}, s{sT}")
    A(f"s_mov_b32 s{sEps}, {hex(f2u(1e-6))}\ns_mov_b32 s{sEps+1}, {hex(f2u(1e-6))}\ns_mov_b32 s{sOne}, {hex(f2u(1.000001))}\ns_mov_b32 s{sOne+1}, {hex(f2u(1.000001))}")
    A(f"s_mov_b32 s{sLog}, {hex(f2u(LOG2E))}\ns_mov_b32 s{sLog+1}, {hex(f2u(LOG2E))}")
    A("s_waitcnt vmcnt(4)")
    A(f"v_readfirstlane_b32 s{sTag}, v19")
    for q in range(8): A(f"v_lshlrev_b32 v{128+2*q}, 16, v{24+q}\nv_and_b32 v{129+2*q}, 0xffff0000, v{24+q}")
    A(f"s_add_u32 s{sTag}, s{sTag}, 1")
    for q in range(4): A(f"v_pk_add_f32 {vr(128+4*q, 2)}, {vr(128+4*q, 2)}, {vr(130+4*q, 2)}")
    A(f"v_pk_add_f32 v[128:129], v[128:129], v[132:133]\nv_pk_add_f32 v[136:137], v[136:137], v[140:141]\nv_pk_add_f32 v[128:129], v[128:129], v[136:137]\nv_add_f32 v2, v128, v129")
    for k in (1, 2, 4, 8): A(f"v_add_f32_dpp v2, v2, v2 row_ror:{k} row_mask:0xf bank_mask:0xf")
    for sw in ("16", "32"): A(f"v_mov_b32 v3, v2\nv_permlane{sw}_swap_b32 v2, v3\nv_add_f32 v2, v2, v3")
    A(f"v_readfirstlane_b32 s{sWsum}, v2")
    def reads(st, s, buf):
        wa, oa = divmod(LA[st % 4], WIN); wb, ob = divmod(LB[st % 3], WIN)
        La = [f"ds_read_b128 {ar(FA + (buf*4+rb)*4, 4)}, v{vAr+2*wa+s} offset:{oa + rb*2048}" for rb in range(4)]
        Lb = [f"ds_read_b64_tr_b16 {ar(FB + (buf*6+p*2+cb)*4 + 2*t, 2)}, v{vBr+2*wb+cb} offset:{ob + s*12288 + p*2048 + t*512}" for p in range(3) for cb in range(2) for t in range(2)]
        return [La[0], Lb[0], Lb[1], La[1], La[2], La[3]] + Lb[2:]
    def mfmas(buf, order=(0, 1, 2, 3, 4, 5)):
        L = []
        for c in order:
            for rb in range(4):
                a = ar(FA + (buf*4+rb)*4, 4); b = ar(FB + (buf*6+c)*4, 4); acc = vr(T(rb, c), 4)
                L.append(f"v_mfma_f32_16x16x32_bf16 {acc}, {b}, {a}, {acc}" if c < 2 else f"v_mfma_f32_16x16x32_bf16 {acc}, {a}, {b}, {acc}")
        return L
    CSA = 128
    def cs_publish():
        L = []
        L.append(f"s_cmp_lg_u32 s{sWm}, 0\ns_cbranch_scc1 L_nocsp")
        L.append(f"v_and_b32 v2, 16, v1\nv_cmp_ne_u32 vcc, 0, v2")
        for p in range(3): L.append(f"v_cndmask_b32 v{24+p}, v{CSA+8*p}, v{CSA+8*p+4}, vcc")
        L.append(f"v_mov_b32 v27, s{sTag}\ns_lshl_b32 s{sT}, s{sG}, 4\ns_add_u32 s{sT}, s{sT}, s{sM}\ns_lshl_b32 s{sT}, s{sT}, 10\ns_lshl_b32 s{sT1}, s{sWh}, 9\ns_add_u32 s{sT}, s{sT}, s{sT1}\ns_add_u32 s{sT}, s{sT}, {WS_CS}")
        L.append(f"s_mov_b64 exec, 0xffffffff\nbuffer_store_dwordx4 v[24:27], v{vL16}, {WSR}, s{sT} offen sc1\ns_mov_b64 exec, -1\nL_nocsp:")
        return ["\n".join(L)]
    NMr = [20, 128, 136, 144]; RSr = [24, 132, 140, 148]
    vS1, vS2 = 17, 18
    CSk = [6, 8, 10, 18]
    stat_addr = [f"v_lshrrev_b32 v2, 4, v1\nv_lshlrev_b32 v2, 4, v2\ns_lshl_b32 s{sT}, s{sWm}, 8\ns_add_u32 s{sT}, s{sT}, {L_NM}\nv_add_u32 v{vS1}, s{sT}, v2",
                 f"v_and_b32 v2, 15, v1\nv_lshlrev_b32 v2, 2, v2\ns_lshl_b32 s{sT}, s{sWh}, 7\ns_add_u32 s{sT}, s{sT}, {L_CSUM}\nv_add_u32 v{vS2}, s{sT}, v2"]
    stat_reads = []
    for rb in range(4):
        stat_reads.append(f"ds_read_b128 {vr(NMr[rb], 4)}, v{vS1} offset:{rb*64}")
        stat_reads.append(f"ds_read_b128 {vr(RSr[rb], 4)}, v{vS1} offset:{512 + rb*64}")
        if rb == 0:
            for i in range(4): stat_reads.append(f"ds_read_b32 v{CSk[i]}, v{vS2} offset:{256*(1 + i//2) + 64*(i&1)}")
            stat_reads.append(f"v_mov_b32 v19, {L_FAST}\nds_read_b32 v19, v19")
    A("s_barrier")
    for x in reads(0, 0, 0): A(x)
    for st in range(16):
        last = st == 15
        for s in range(2):
            buf = s
            lasts = s == 1
            if lasts and last: r = stat_reads
            else: r = reads(st + 1, 0, buf ^ 1) if lasts else reads(st, 1, buf ^ 1)
            extra = []
            if st == 3 and s == 0: extra = extra + cs_publish()
            if st == 14 and s == 0: extra = stat_addr
            A("s_waitcnt lgkmcnt(0)")
            if s == 0: stamp("C", str(st))
            if st == 0:
                A(f"s_cmp_lg_u32 s{sWm}, 0\ns_cbranch_scc1 L_nocs{s}")
                for c in range(6):
                    A(f"v_mfma_f32_16x16x32_bf16 {vr(CSA+4*c, 4)}, {ar(aOne, 4)}, {ar(FB + (buf*6+c)*4, 4)}, {0 if s == 0 else vr(CSA+4*c, 4)}")
                A(f"L_nocs{s}:")
            ri = 0; ei = 0
            for i, mm in enumerate(mfmas(buf, (2, 3, 4, 5, 0, 1) if (lasts and last) else (0, 1, 2, 3, 4, 5))):
                A(mm)
                if lasts and i == 0:
                    stamp("C", f"b{st}")
                    A("s_barrier")
                    stamp("C", f"a{st}")
                if ri < len(r):
                    A(r[ri]); ri += 1
                elif ei < len(extra) and i % 2 == 0:
                    A(extra[ei]); ei += 1
            assert ri == len(r) and ei == len(extra)
    stamp("C", "loop")
    def bc(reg):
        assert reg % 2 == 0
        return vr(reg, 2), 0
    def lnfold(t, nm, cs, kind):
        L = []
        for h in range(2):
            if kind == "row":
                p, o = bc(cs); L.append(f"v_pk_fma_f32 {vr(t+2*h, 2)}, {vr(nm+2*h, 2)}, {p}, {vr(t+2*h, 2)} op_sel:[0,{o},0] op_sel_hi:[1,{o},1]")
            else:
                p, o = bc(nm); L.append(f"v_pk_fma_f32 {vr(t+2*h, 2)}, {vr(cs+2*h, 2)}, {p}, {vr(t+2*h, 2)} op_sel:[0,{o},0] op_sel_hi:[1,{o},1]")
        return L
    def phi(t, rs, rl, kind, dst, tmp):
        L = []
        for h in range(2):
            if kind == "row":
                L.append(f"v_pk_mul_f32 {vr(tmp+2*h, 2)}, {vr(t+2*h, 2)}, {vr(rl+2*h, 2)}")
            else:
                p, o = bc(rl); L.append(f"v_pk_mul_f32 {vr(tmp+2*h, 2)}, {vr(t+2*h, 2)}, {p} op_sel:[0,{o}] op_sel_hi:[1,{o}]")
        for h in range(2):
            if kind == "row":
                L.append(f"v_pk_fma_f32 {vr(t+2*h, 2)}, {vr(t+2*h, 2)}, {vr(rs+2*h, 2)}, s[{sOne}:{sOne+1}]")
            else:
                p, o = bc(rs); L.append(f"v_pk_fma_f32 {vr(t+2*h, 2)}, {vr(t+2*h, 2)}, {p}, s[{sOne}:{sOne+1}] op_sel:[0,{o},0] op_sel_hi:[1,{o},1]")
        for e in range(4): L.append(f"v_exp_f32_e64 v{tmp+e}, v{tmp+e} clamp")
        for h in range(2): L.append(f"v_pk_add_f32 {vr(tmp+2*h, 2)}, {vr(tmp+2*h, 2)}, s[{sEps}:{sEps+1}]")
        for e in range(4): L.append(f"v_max_f32 v{t+e}, v{t+e}, v{tmp+e}")
        for h in range(2): L.append(f"v_cvt_pk_bf16_f32 v{dst+h}, v{t+2*h}, v{t+2*h+1}")
        return L
    def zip2(a, b):
        o = []
        for i in range(max(len(a), len(b))):
            if i < len(a): o.append(a[i])
            if i < len(b): o.append(b[i])
        return o
    KVa = lambda dt, et: T(1, 2 + dt*2 + et)
    Za = lambda dt: 20 + 4*dt
    A("s_waitcnt lgkmcnt(0)")
    A(f"v_readfirstlane_b32 s{sFast}, v19")
    for rb in range(4):
        P = rb >> 1; o = 2*(rb & 1)
        for h in range(2): A(f"v_pk_mul_f32 {vr(28+2*h, 2)}, {vr(RSr[rb]+2*h, 2)}, s[{sLog}:{sLog+1}]")
        k0 = lnfold(T(rb, 2), NMr[rb], CSk[0], "row") + phi(T(rb, 2), RSr[rb], 28, "row", T(2*P, 2) + o, 2)
        k1 = lnfold(T(rb, 3), NMr[rb], CSk[1], "row") + phi(T(rb, 3), RSr[rb], 28, "row", T(2*P, 3) + o, 12)
        for x in zip2(k0, k1): A(x)
        vv = []
        for cb in range(2):
            t = T(rb, 4+cb)
            L = lnfold(t, NMr[rb], CSk[2+cb], "row")
            for h in range(2): L.append(f"v_pk_mul_f32 {vr(t+2*h, 2)}, {vr(t+2*h, 2)}, {vr(RSr[rb]+2*h, 2)}")
            for h in range(2): L.append(f"v_cvt_pk_bf16_f32 v{T(2*P, 4+cb)+o+h}, v{t+2*h}, v{t+2*h+1}")
            vv.append(L)
        for x in zip2(vv[0], vv[1]): A(x)
        if rb & 1:
            for dt in range(2):
                for et in range(2):
                    A(f"v_mfma_f32_16x16x32_bf16 {vr(KVa(dt, et), 4)}, {vr(T(2*P, 2+dt), 4)}, {vr(T(2*P, 4+et), 4)}, {0 if P == 0 else vr(KVa(dt, et), 4)}")
                A(f"v_mfma_f32_16x16x32_bf16 {vr(Za(dt), 4)}, {vr(T(2*P, 2+dt), 4)}, {ar(aOne, 4)}, {0 if P == 0 else vr(Za(dt), 4)}")
    A(f"s_lshl_b32 s{sT}, s{sWave}, 11\ns_add_u32 s{sT}, s{sT}, {L_EX}\nv_add_u32 v2, s{sT}, v{vL16}\nv_xor_b32 v3, 4096, v2")
    A(f"v_lshrrev_b32 v4, 4, v1\nv_lshlrev_b32 v5, 4, v4\nv_lshlrev_b32 v4, 5, v4\ns_lshl_b32 s{sT}, s{sWave}, 6\ns_add_u32 s{sT}, s{sT}, {L_ZEX}\nv_add_u32 v5, s{sT}, v5\nv_xor_b32 v6, 128, v5")
    A(f"s_lshl_b32 s{sT2}, s{sWh}, 1\ns_add_u32 s{sT2}, s{sT2}, s{sWm}\ns_lshl_b32 s{sT2}, s{sT2}, 10\ns_add_u32 s{sT2}, s{sT2}, s{sB0}")
    A(f"s_lshl_b32 s{sT3}, s{sWh}, 7\ns_lshl_b32 s{sT}, s{sWm}, 4\ns_add_u32 s{sT3}, s{sT3}, s{sT}\ns_add_u32 s{sT3}, s{sT3}, s{sB0}\ns_add_u32 s{sT3}, s{sT3}, 4096")
    A(f"s_mov_b32 s{sMask}, 0x00010001\ns_mov_b32 s{sMask+1}, 0x00010001")
    A(f"s_cmp_eq_u32 s{sWm}, 0\ns_cbranch_scc0 L_ex1")
    R = 128
    def exch(wm):
        L = [f"ds_write_b128 v2, {vr(KVa(0, 1-wm), 4)}", f"ds_write_b128 v2, {vr(KVa(1, 1-wm), 4)} offset:1024", f"ds_write_b128 v5, {vr(Za(1-wm), 4)}",
             "s_waitcnt lgkmcnt(0)", "s_barrier",
             f"ds_read_b128 {vr(R, 4)}, v3", f"ds_read_b128 {vr(R+4, 4)}, v3 offset:1024", f"ds_read_b128 {vr(R+8, 4)}, v6",
             "s_waitcnt lgkmcnt(1)"]
        for dt in range(2):
            for h in range(2): L.append(f"v_pk_add_f32 {vr(R+4*dt+2*h, 2)}, {vr(R+4*dt+2*h, 2)}, {vr(KVa(dt, wm)+2*h, 2)}")
        L.append("s_waitcnt lgkmcnt(0)")
        for h in range(2): L.append(f"v_pk_add_f32 {vr(R+8+2*h, 2)}, {vr(R+8+2*h, 2)}, {vr(Za(wm)+2*h, 2)}")
        return L
    for x in exch(0): A(x)
    A("L_ex_d:")
    out_of_line.append("L_ex1:\n" + "\n".join(exch(1)) + "\ns_branch L_ex_d")
    for e in range(4): A(f"v_cvt_pk_bf16_f32 v{R+12+e}, v{R+2*e}, v{R+2*e+1}")
    fast_slow(lambda f: [f"buffer_store_dwordx4 {vr(R+12, 4)}, v{vL16}, {WSR}, s{sT2} offen{f}", f"s_mov_b64 exec, s[{sMask}:{sMask+1}]",
                         f"buffer_store_dwordx4 {vr(R+8, 4)}, v4, {WSR}, s{sT3} offen{f}", "s_mov_b64 exec, -1"], "L_kvp")
    stamp("C", "kv")
    NMq, RSq, RLq, CSq = [8, 10, 12, 14], [128, 130, 132, 134], [20, 22, 4, 6], 144
    A(f"v_and_b32 v2, 15, v1\nv_lshlrev_b32 v2, 2, v2\ns_lshl_b32 s{sT}, s{sWm}, 8\ns_add_u32 s{sT}, s{sT}, {L_NM}\nv_add_u32 v2, s{sT}, v2")
    A(f"v_lshrrev_b32 v3, 4, v1\nv_lshlrev_b32 v3, 4, v3\ns_lshl_b32 s{sT}, s{sWh}, 7\ns_add_u32 s{sT}, s{sT}, {L_CSUM}\nv_add_u32 v5, s{sT}, v3")
    for rb in range(4): A(f"ds_read_b32 v{NMq[rb]}, v2 offset:{64*rb}\nds_read_b32 v{RSq[rb]}, v2 offset:{512 + 64*rb}")
    for c in range(2): A(f"ds_read_b128 {vr(CSq+4*c, 4)}, v5 offset:{64*c}")
    A(f"s_lshl_b32 s{sT}, s{sWh}, 11\ns_add_u32 s{sT}, s{sT}, {L_KVF}\nv_add_u32 v17, s{sT}, v{vL16}\ns_lshl_b32 s{sT}, s{sWh}, 6\ns_add_u32 s{sT}, s{sT}, {L_ZF}\nv_add_u32 v18, s{sT}, v3")
    A("s_waitcnt lgkmcnt(0)")
    for rb in range(4): A(f"v_mul_f32 v{RLq[rb]}, s{sLog}, v{RSq[rb]}")
    for rb in range(4):
        q0 = lnfold(T(rb, 0), NMq[rb], CSq, "col") + phi(T(rb, 0), RSq[rb], RLq[rb], "col", T(rb, 0), 24)
        q1 = lnfold(T(rb, 1), NMq[rb], CSq+4, "col") + phi(T(rb, 1), RSq[rb], RLq[rb], "col", T(rb, 0) + 2, 28)
        for x in zip2(q0[:-2], q1[:-2]) + q0[-2:] + q1[-2:]: A(x)
    vWb, vWc, vXa, vO2 = 8, 12, 20, 19
    A(f"v_lshrrev_b32 v2, 4, v1\nv_bfe_u32 v3, v1, 2, 2\nv_lshl_add_u32 v4, v2, 2, v3\nv_lshlrev_b32 v5, 7, v4\nv_bfe_u32 v4, v4, 1, 2\nv_lshl_add_u32 v5, v4, 5, v5")
    A(f"v_and_b32 v4, 3, v1\nv_lshl_add_u32 v5, v4, 3, v5\nv_add_u32 v{vWb}, {L_WO}, v5")
    for c in range(1, 4): A(f"v_xor_b32 v{vWb+c}, {32*c}, v{vWb}")
    A(f"v_and_b32 v3, 15, v1\nv_lshrrev_b32 v4, 1, v3\nv_lshrrev_b32 v5, 1, v2\nv_xor_b32 v4, v4, v5\nv_lshlrev_b32 v4, 4, v4\nv_lshl_add_u32 v4, v3, 7, v4\nv_and_b32 v5, 1, v2\nv_lshl_add_u32 v4, v5, 3, v4")
    A(f"s_lshl_b32 s{sT}, s{sWave}, 12\nv_add_u32 v{vXa}, s{sT}, v4")
    for c in range(1, 4): A(f"v_xor_b32 v{vXa+c}, {32*c}, v{vXa}")
    A(f"v_add_u32 v{vO2}, 32768, v{vL16}")
    A(f"s_lshl_b32 s{sKA}, s{sG}, 18\ns_lshl_b32 s{sT}, s{sWave}, 16\ns_add_u32 s{sKA}, s{sKA}, s{sT}\ns_add_u32 s{sKA}, s{sKA}, {WS_O}")
    A("s_barrier")
    stamp("C", "E2")
    A(f"ds_read_b128 a[0:3], v17\nds_read_b128 a[4:7], v17 offset:1024\nds_read_b128 a[8:11], v18\ns_waitcnt lgkmcnt(0)")
    for rb in range(4):
        A(f"v_mfma_f32_16x16x32_bf16 {vr(T(rb, 4), 4)}, a[8:11], {vr(T(rb, 0), 4)}, 0")
        A(f"v_mfma_f32_16x16x32_bf16 {vr(T(rb, 2), 4)}, a[0:3], {vr(T(rb, 0), 4)}, 0")
        A(f"v_mfma_f32_16x16x32_bf16 {vr(T(rb, 3), 4)}, a[4:7], {vr(T(rb, 0), 4)}, 0")
    for rb in range(4):
        d = T(rb, 4)
        A(f"v_add_f32 v{d}, s{sEps}, v{d}\nv_rcp_f32 v{d}, v{d}")
        for et in range(2):
            for h in range(2): A(f"v_pk_mul_f32 {vr(T(rb, 2+et)+2*h, 2)}, {vr(T(rb, 2+et)+2*h, 2)}, {vr(d, 2)} op_sel_hi:[1,0]")
        for et in range(2):
            for h in range(2): A(f"v_cvt_pk_bf16_f32 v{T(rb, 5)+2*et+h}, v{T(rb, 2+et)+2*h}, v{T(rb, 2+et)+2*h+1}")
        A(f"s_add_u32 s{sT}, s{sB1}, {rb*32768}\nbuffer_store_dwordx4 {vr(T(rb, 5), 4)}, v{vL16}, {WSR}, s{sT} offen sc1")
    stamp("C", "O")
    vm = VM()
    AC2, OB = 24, 56
    ND = odepth
    def OBr(i, hh, rb): return OB + (i % ND)*16 + (hh*2 + rb)*4
    def o_loads(i):
        L = [f"s_add_u32 s{sT}, s{sM}, {i}\ns_and_b32 s{sT}, s{sT}, 15\ns_lshl_b32 s{sT}, s{sT}, 11\ns_add_u32 s{sT}, s{sT}, s{sKA}"]
        for hh in range(2):
            for rb in range(2):
                L.append(f"buffer_load_dwordx4 {vr(OBr(i, hh, rb), 4)}, v{vO2 if rb else vL16}, {WSR}, s{sT} offen offset:{1024*hh} sc1")
        return L
    def o_check(i):
        A(vm.wait(f"o{i}"))
        retry([f"v_max3_u32 v2, v{OBr(i,0,0)}, v{OBr(i,0,1)}, v{OBr(i,1,0)}", f"v_max_u32 v2, v2, v{OBr(i,1,1)}", "v_cmp_eq_u32 vcc, -1, v2"], o_loads(i), f"L_o{i}")
    def wo_cur(i):
        return [f"s_add_u32 s{sT1}, s{sM}, {i}\ns_and_b32 s{sT1}, s{sT1}, 15\ns_lshl_b32 s{sT1}, s{sT1}, 13"] + [f"v_add_u32 v{vWc+c}, s{sT1}, v{vWb+c}" for c in range(4)]
    def wo_reads(hh, buf):
        return [f"ds_read_b64_tr_b16 {ar(buf*16 + c*4 + 2*t, 2)}, v{vWc+c} offset:{hh*4096 + t*2048}" for c in range(4) for t in range(2)]
    if owait: A("s_waitcnt vmcnt(0)")
    for i in range(ND):
        for x in o_loads(i): A(x)
        vm.issue(f"o{i}", 4)
    for rb in range(2):
        for c in range(4): A(f"ds_read_b64 {vr(AC2 + (rb*4+c)*4 + 2, 2)}, v{vXa+c} offset:{rb*2048}")
    for x in wo_cur(0): A(x)
    A("s_waitcnt lgkmcnt(0)")
    for x in wo_reads(0, 0): A(x)
    for t in range(8):
        b = AC2 + 4*t
        A(f"v_lshlrev_b32 v{b}, 16, v{b+2}\nv_and_b32 v{b+1}, 0xffff0000, v{b+2}\nv_lshlrev_b32 v{b+2}, 16, v{b+3}\nv_and_b32 v{b+3}, 0xffff0000, v{b+3}")
    o_check(0)
    stamp("C", "Ook")
    for i in range(16):
        for hh in range(2):
            buf = hh
            mm = [f"v_mfma_f32_16x16x32_bf16 {vr(AC2 + (rb*4+c)*4, 4)}, {ar(buf*16 + c*4, 4)}, {vr(OBr(i, hh, rb), 4)}, {vr(AC2 + (rb*4+c)*4, 4)}" for c in range(4) for rb in range(2)]
            A("s_waitcnt lgkmcnt(0)")
            if hh == 0:
                fill = wo_reads(1, 1)
                for k in range(8):
                    A(mm[k]); A(fill[k])
                if i < 15:
                    for x in wo_cur(i+1): A(x)
            else:
                fill = wo_reads(0, 0) if i < 15 else []
                for k in range(8):
                    A(mm[k])
                    if k < len(fill): A(fill[k])
                if i + ND < 16:
                    for x in o_loads(i + ND): A(x)
                    vm.issue(f"o{i+ND}", 4)
                if i < 15: o_check(i + 1)
    A("s_barrier")
    stamp("C", "E3")
    W = 56; S = 72
    for q in range(8): A(f"v_accvgpr_read_b32 v{88+q}, a{96+q}")
    for q in range(8): A(f"v_lshlrev_b32 v{W+2*q}, 16, v{88+q}\nv_and_b32 v{W+2*q+1}, 0xffff0000, v{88+q}")
    for rb in range(2):
        b = AC2 + rb*16; s_ = S + rb*8
        A(f"v_pk_add_f32 {vr(s_, 2)}, {vr(b, 2)}, {vr(b+2, 2)}\nv_pk_mul_f32 {vr(s_+2, 2)}, {vr(b, 2)}, {vr(b, 2)}\nv_pk_mul_f32 {vr(s_+4, 2)}, {vr(b, 2)}, {vr(W, 2)}")
        for q in range(1, 8):
            if q >= 2: A(f"v_pk_add_f32 {vr(s_, 2)}, {vr(s_, 2)}, {vr(b+2*q, 2)}")
            A(f"v_pk_fma_f32 {vr(s_+2, 2)}, {vr(b+2*q, 2)}, {vr(b+2*q, 2)}, {vr(s_+2, 2)}\nv_pk_fma_f32 {vr(s_+4, 2)}, {vr(b+2*q, 2)}, {vr(W+2*q, 2)}, {vr(s_+4, 2)}")
        for e in range(3): A(f"v_add_f32 v{s_+e}, v{s_+2*e}, v{s_+2*e+1}")
    for e in range(3): A(f"v_permlane32_swap_b32 v{S+e}, v{S+8+e}")
    for e in range(3): A(f"v_add_f32 v{S+e}, v{S+e}, v{S+8+e}")
    for e in range(3): A(f"v_mov_b32 v{S+8+e}, v{S+e}")
    for e in range(3): A(f"v_permlane16_swap_b32 v{S+e}, v{S+8+e}")
    for e in range(3): A(f"v_add_f32 v{S+e}, v{S+e}, v{S+8+e}")
    A(f"v_mov_b32 v{S+3}, s{sTag}")
    A(f"v_and_b32 v2, 15, v1\nv_lshrrev_b32 v3, 5, v1\nv_lshlrev_b32 v4, 4, v2\nv_lshl_add_u32 v4, v3, 8, v4")
    A(f"s_lshl_b32 s{sKB}, s{sG}, 15\ns_lshl_b32 s{sT}, s{sWave}, 9\ns_add_u32 s{sKB}, s{sKB}, s{sT}\ns_add_u32 s{sKB}, s{sKB}, {WS_ST}\ns_lshl_b32 s{sT}, s{sM}, 11\ns_add_u32 s{sT2}, s{sKB}, s{sT}")
    A(f"s_mov_b32 s{sMask}, 0xffff\ns_mov_b32 s{sMask+1}, 0xffff\ns_mov_b64 exec, s[{sMask}:{sMask+1}]")
    fast_slow(lambda f: [f"buffer_store_dwordx4 {vr(S, 4)}, v4, {WSR}, s{sT2} offen{f}"], "L_stp")
    A("s_mov_b64 exec, -1")
    GS = 96
    A(f"v_and_b32 v2, 31, v1\nv_lshlrev_b32 v5, 4, v2\nv_lshl_add_u32 v5, v3, 11, v5")
    stl = [f"s_add_u32 s{sT}, s{sKB}, {4096*j}\nbuffer_load_dwordx4 {vr(GS+4*j, 4)}, v5, {WSR}, s{sT} offen sc1" for j in range(8)]
    for x in stl: A(x)
    stamp("C", "ST")
    for rb in range(2):
        for c in range(4):
            b = AC2 + (rb*4+c)*4; t = 128 + 2*(rb*4+c)
            A(f"v_cvt_pk_bf16_f32 v{t}, v{b}, v{b+1}\nv_cvt_pk_bf16_f32 v{t+1}, v{b+2}, v{b+3}\nds_write_b64 v{vXa+c}, {vr(t, 2)} offset:{rb*2048}")
    A(f"s_lshl_b32 s{sT}, s{sG}, 7\ns_lshl_b32 s{sT1}, s{sWave}, 5\ns_add_u32 s{sT}, s{sT}, s{sT1}\ns_sub_u32 s{sT}, 2047, s{sT}\nv_sub_u32 v6, s{sT}, v2")
    A(f"s_lshl_b32 s{sT}, s{sWave}, 9\ns_add_u32 s{sT}, s{sT}, {L_ST2}\nv_lshlrev_b32 v7, 4, v2\nv_add_u32 v7, s{sT}, v7")
    A("s_waitcnt vmcnt(0)")
    chk = [f"v_xor_b32 v{88+j}, s{sTag}, v{GS+4*j+3}" for j in range(8)] + ["v_or3_b32 v88, v88, v89, v90", "v_or3_b32 v91, v91, v92, v93", "v_or3_b32 v88, v88, v94, v95", "v_or_b32 v88, v88, v91", "v_cmp_ne_u32 vcc, 0, v88"]
    retry(chk, stl, "L_st")
    for (d, s_) in ((0, 1), (2, 3), (4, 5), (6, 7), (0, 2), (4, 6), (0, 4)):
        A(f"v_pk_add_f32 {vr(GS+4*d, 2)}, {vr(GS+4*d, 2)}, {vr(GS+4*s_, 2)}\nv_add_f32 v{GS+4*d+2}, v{GS+4*d+2}, v{GS+4*s_+2}")
    for e in range(3): A(f"v_mov_b32 v{GS+4+e}, v{GS+e}")
    for e in range(3): A(f"v_permlane32_swap_b32 v{GS+e}, v{GS+4+e}")
    for e in range(3): A(f"v_add_f32 v{GS+e}, v{GS+e}, v{GS+4+e}")
    K = 72
    A(f"v_mul_f32 v{K+1}, {hex(f2u(1.0/1024))}, v{GS}\nv_mul_f32 v{GS+1}, {hex(f2u(1.0/1024))}, v{GS+1}")
    A(f"v_fma_f32 v{GS+1}, -v{K+1}, v{K+1}, v{GS+1}\nv_fma_f32 v{GS+2}, -v{K+1}, s{sWsum}, v{GS+2}\nv_max_f32 v{GS+1}, 0, v{GS+1}\nv_add_f32 v{GS+1}, {hex(f2u(1e-5))}, v{GS+1}")
    A(f"v_rsq_f32 v{K+2}, v{GS+1}\nv_mov_b32 v{K+3}, s{sTag}\nv_mul_f32 v{GS+2}, v{GS+2}, v{K+2}")
    A(f"v_ashrrev_i32 v{GS+3}, 31, v{GS+2}\nv_or_b32 v{GS+3}, 0x80000000, v{GS+3}\nv_xor_b32 v{GS+2}, v{GS+2}, v{GS+3}\ns_mov_b32 s{sT}, 0xfffff800\nv_and_or_b32 v{K}, v{GS+2}, s{sT}, v6")
    A(f"ds_write_b128 v7, {vr(K, 4)}")
    def top2_32(key, hi, lo, t1, t2):
        A(f"v_mov_b32_dpp v{t1}, v{key} row_ror:1 row_mask:0xf bank_mask:0xf\nv_max_u32 v{hi}, v{key}, v{t1}\nv_min_u32 v{lo}, v{key}, v{t1}")
        for k in (2, 4, 8):
            A(f"v_mov_b32_dpp v{t1}, v{hi} row_ror:{k} row_mask:0xf bank_mask:0xf\nv_max_u32_dpp v{t2}, v{lo}, v{lo} row_ror:{k} row_mask:0xf bank_mask:0xf")
            A(f"v_med3_u32 v{lo}, v{hi}, v{t1}, v{t2}\nv_max_u32 v{hi}, v{hi}, v{t1}")
        A(f"v_mov_b32 v{t1}, v{hi}\nv_mov_b32 v{t2}, v{lo}\nv_permlane16_swap_b32 v{hi}, v{t1}\nv_permlane16_swap_b32 v{lo}, v{t2}")
        A(f"v_max_u32 v{t2}, v{lo}, v{t2}\nv_med3_u32 v{lo}, v{hi}, v{t1}, v{t2}\nv_max_u32 v{hi}, v{hi}, v{t1}")
    top2_32(K, 76, 77, 78, 79)
    A(f"s_lshl_b32 s{sT}, s{sWave}, 3\ns_add_u32 s{sT}, s{sT}, {L_TOP}\nv_mov_b32 v2, s{sT}\nds_write_b64 v2, v[76:77]\nv_mov_b32 v2, {L_TOP}")
    A(f"v_add_f32 v80, 1.0, v{K+2}\nv_mul_f32_e64 v56, -v{K+1}, v{K+2}\nv_mov_b32 v82, v80\nv_mov_b32 v58, v56\nv_permlane16_swap_b32 v80, v82\nv_permlane16_swap_b32 v56, v58")
    A("s_waitcnt lgkmcnt(0)\ns_barrier")
    stamp("C", "E4")
    A(f"ds_read_b128 v[88:91], v2\nds_read_b128 v[92:95], v2 offset:16\ns_waitcnt lgkmcnt(0)")
    A(f"v_max_u32 v89, v89, v91\nv_max_u32 v93, v93, v95\nv_med3_u32 v89, v88, v90, v89\nv_med3_u32 v93, v92, v94, v93\nv_max_u32 v88, v88, v90\nv_max_u32 v92, v92, v94")
    A(f"v_max_u32 v89, v89, v93\nv_med3_u32 v89, v88, v92, v89\nv_max_u32 v88, v88, v92")
    A(f"v_readfirstlane_b32 s{sK2}, v89\nv_readfirstlane_b32 s{sK1}, v88")
    A(f"s_not_b32 s{sC1}, s{sK2}\ns_and_b32 s{sC1}, s{sC1}, 127\ns_not_b32 s{sC0}, s{sK1}\ns_and_b32 s{sC0}, s{sC0}, 127")
    A(f"s_cmp_lg_u32 s{sWave}, 0\ns_cbranch_scc1 L_nocand")
    A(f"v_mov_b32 v2, s{sC0}\nv_mov_b32 v3, s{sC1}\nv_and_b32 v4, 8, v1\nv_cmp_ne_u32 vcc, 0, v4\nv_cndmask_b32 v5, v2, v3, vcc")
    A(f"v_bfe_u32 v6, v5, 1, 3\nv_and_b32 v7, 7, v1\nv_xor_b32 v6, v6, v7\nv_lshlrev_b32 v6, 4, v6\nv_lshl_add_u32 v6, v5, 7, v6\nds_read_b128 v[88:91], v6")
    A(f"v_cmp_eq_u32 vcc, 1, v1\nv_cndmask_b32 v5, v2, v3, vcc\nv_lshlrev_b32 v5, 4, v5\nv_add_u32 v5, {L_ST2}, v5\nds_read_b128 v[92:95], v5")
    A(f"v_lshlrev_b32 v4, 8, v4\nv_lshl_add_u32 v4, v7, 4, v4")
    A(f"s_lshl_b32 s{sT}, s{sG}, 12\ns_lshl_b32 s{sT1}, s{sM}, 7\ns_add_u32 s{sT}, s{sT}, s{sT1}\ns_add_u32 s{sT}, s{sT}, {WS_CSEG}")
    A(f"s_lshl_b32 s{sT1}, s{sG}, 7\ns_add_u32 s{sT1}, s{sT1}, {WS_REC}")
    A(f"s_mov_b64 exec, 0xffff\ns_waitcnt lgkmcnt(1)\nbuffer_store_dwordx4 v[88:91], v4, {WSR}, s{sT} offen sc1")
    A(f"s_cmp_lg_u32 s{sG}, s{sM}\ns_cbranch_scc1 L_norec\ns_mov_b64 exec, 3\ns_waitcnt lgkmcnt(0)\nbuffer_store_dwordx4 v[92:95], v{vL16}, {WSR}, s{sT1} offen sc1\nL_norec:\ns_mov_b64 exec, -1")
    A("L_nocand:")
    recl = [f"buffer_load_dwordx4 v[84:87], v8, {WSR}, s{sKB} offen sc1"]
    A(f"v_bfe_u32 v8, v1, 1, 4\nv_lshlrev_b32 v8, 7, v8\nv_and_b32 v2, 1, v1\nv_lshl_add_u32 v8, v2, 4, v8\ns_mov_b32 s{sKB}, {WS_REC}")
    for rb in range(2):
        for c in range(4):
            b = AC2 + (rb*4+c)*4; t = 128 + 2*(rb*4+c)
            for h in range(2): A(f"v_pk_fma_f32 {vr(b+2*h, 2)}, {vr(b+2*h, 2)}, {vr(80+2*rb, 2)}, {vr(56+2*rb, 2)} op_sel_hi:[1,0,0]")
            A(f"v_cvt_pk_bf16_f32 v{t}, v{b}, v{b+1}\nv_cvt_pk_bf16_f32 v{t+1}, v{b+2}, v{b+3}\nds_write_b64 v{vXa+c}, {vr(t, 2)} offset:{L_OUT + rb*2048}")
    A(f"v_lshrrev_b32 v2, 3, v1\nv_lshrrev_b32 v3, 4, v1\nv_and_b32 v4, 7, v1\nv_xor_b32 v3, v3, v4\nv_lshlrev_b32 v3, 4, v3\nv_lshl_add_u32 v3, v2, 7, v3")
    A(f"s_lshl_b32 s{sT}, s{sWave}, 12\nv_add_u32 v9, s{sT}, v3\nv_xor_b32 v10, 64, v9")
    A(f"v_lshlrev_b32 v11, 11, v2\nv_lshl_add_u32 v11, v4, 4, v11\ns_lshl_b32 s{sT}, s{sWave}, 5\nv_add_u32 v12, s{sT}, v2")
    A(f"s_lshl_b32 s{sB0}, s{sG}, 18\ns_lshl_b32 s{sT}, s{sWave}, 16\ns_add_u32 s{sB0}, s{sB0}, s{sT}\ns_lshl_b32 s{sT}, s{sM}, 7\ns_add_u32 s{sB0}, s{sB0}, s{sT}")
    A("s_waitcnt lgkmcnt(0)")
    OT = 96
    for i in range(4): A(f"ds_read_b128 {vr(OT+4*i, 4)}, v{10 if i & 1 else 9} offset:{L_OUT + 1024*i}")
    sCm = 96
    for i in range(4):
        A(f"v_add_u32 v2, {8*i}, v12\nv_cmp_ne_u32 vcc, s{sC0}, v2\nv_cmp_ne_u32_e64 s[{sMask}:{sMask+1}], s{sC1}, v2\ns_add_u32 s{sT}, s{sB0}, {16384*i}")
        A(f"s_waitcnt lgkmcnt({3-i})\ns_and_b64 exec, vcc, s[{sMask}:{sMask+1}]\nbuffer_store_dwordx4 {vr(OT+4*i, 4)}, v11, s[{SOUT}:{SOUT+3}], s{sT} offen\ns_mov_b64 exec, -1")
    stamp("C", "out")
    A(f"s_cmp_lg_u32 s{sWave}, 1\ns_cbranch_scc1 L_nopick")
    for x in recl: A(x)
    A("s_waitcnt vmcnt(0)")
    retry([f"v_cmp_ne_u32 vcc, s{sTag}, v87"], recl, "L_rec")
    top2_32(84, 76, 77, 78, 79)
    A(f"v_cmp_eq_u32 vcc, v84, v77\nv_cmp_eq_u32_e64 s[{sMask}:{sMask+1}], v84, v76\nv_and_b32 v87, 31, v1\nv_mov_b32 v2, {L_PICK}\nv_mov_b32 v3, {L_PICK+16}\nv_cndmask_b32 v2, v2, v3, vcc")
    A(f"s_or_b64 exec, vcc, s[{sMask}:{sMask+1}]\nds_write_b128 v2, v[84:87]\ns_mov_b64 exec, -1")
    A(f"s_cmp_lg_u32 s2, 0\ns_cbranch_scc1 L_nopick\nv_mov_b32 v2, s{sTag}\nv_mov_b32 v3, 0\ns_mov_b64 exec, 1\nbuffer_store_dword v2, v3, {WSR}, 0 offen sc1\ns_mov_b64 exec, -1")
    A("L_nopick:")
    A(f"v_mov_b32 v2, {L_PICK}\ns_waitcnt lgkmcnt(0)\ns_barrier")
    stamp("C", "E5")
    A(f"ds_read_b32 v3, v2\nds_read_b32 v4, v2 offset:16\ns_waitcnt lgkmcnt(0)\nv_readfirstlane_b32 s{sT2}, v3\nv_readfirstlane_b32 s{sT3}, v4")
    for (k, c) in ((sK1, sC0), (sK2, sC1)):
        A(f"s_cmp_eq_u32 s{k}, s{sT2}\ns_cselect_b32 s{c}, 255, s{c}\ns_cmp_eq_u32 s{k}, s{sT3}\ns_cselect_b32 s{c}, 255, s{c}")
    for i in range(4):
        A(f"v_add_u32 v2, {8*i}, v12\nv_cmp_eq_u32 vcc, s{sC0}, v2\nv_cmp_eq_u32_e64 s[{sMask}:{sMask+1}], s{sC1}, v2\ns_add_u32 s{sT}, s{sB0}, {16384*i}")
        A(f"s_or_b64 exec, vcc, s[{sMask}:{sMask+1}]\ns_cbranch_execz L_nodef{i}\nbuffer_store_dwordx4 {vr(OT+4*i, 4)}, v11, s[{SOUT}:{SOUT+3}], s{sT} offen\nL_nodef{i}:\ns_mov_b64 exec, -1")
    stamp("C", "end")
    dump_stamps("C")
    A("L_end:\ns_endpgm")
    for x in out_of_line: A(x)
    A('.section .rodata,"a"\n.p2align 6')
    kernel_desc(A, name, 152, 104)
    txt, n = hazard.fix(A.text())
    import re
    assert not re.search(r"v_pk_\w+_f32.* op_sel:\[[0,]*1", txt)
    if stamps: txt += "; stampsC " + " ".join(stamp_names["C"]) + "\n; stampsL " + " ".join(stamp_names["L"]) + "\n"
    return txt

if __name__ == "__main__":
    kw = eval("dict(%s)" % sys.argv[2]) if len(sys.argv) > 2 else {}
    out = sys.argv[1] if len(sys.argv) > 1 else os.path.join(os.path.dirname(os.path.abspath(__file__)), "..", NAME + ".s")
    open(out, "w").write(gen(**kw))
```

```python
import sys, os
sys.path.insert(0, os.path.dirname(os.path.abspath(__file__)))
from asmlib import *
import hazard

NAME = "sequential_preLN__linear_attn_block__moe_arch_mod__prompt"

WS_EPOCH = 0
WS_IDR = 0x1000
WS_RS = 0x2000
WS_CS = 0x10000
WS_KV = 0x80000
KVS = 4352
WS_O = 0x200000
WS_ST = 0x600000
WS_REC = 0x680000
WS_CSEG = 0x690000
WS_PX = 0x6A0000
WS_YP = 0x700000
WS_DBG = 0x1000000

LA = [122880, 106496, 65536, 24576]
LB = [0, 81920, 40960]
L_XT = 0
L_EX = 16384
L_KVF = 24576
L_WO = 28672
L_ST = 159744
L_NM, L_RS, L_CSUM = L_ST, L_ST + 512, L_ST + 1024
L_FAST = L_ST + 1792
L_ZF = L_ST + 1856
L_TOP = L_ST + 2048
L_PICK = L_ST + 2112
L_RED = L_ST + 2304
L_FIN = L_ST + 3328
L_ZEX = L_ST + 3840
L_OUT = 32768
L_MOE = 65536
L_ST2 = 49152

SENT = -1
LOG2E = 1.4426950408889634
AND3, NANDAND, ORAND = "bitop3:0x80", "bitop3:0x2a", "bitop3:0xa8"
def tagchk(regs, ref, mask, ones, t=2):
    X = [f"v_xor_b32 v{r}, {ref}, v{r}" for r in regs]
    op3 = (lambda d, a, b, c: f"v_bitop3_b32 v{d}, v{a}, v{b}, v{c} {AND3}") if ones else (lambda d, a, b, c: f"v_or3_b32 v{d}, v{a}, v{b}, v{c}")
    assert len(regs) % 2 == 0
    L = X[:3] + [X[3], op3(t, *regs[:3])]
    for i in range(3, len(regs) - 1, 2): L += X[i+1:i+3] + [op3(t, t, regs[i], regs[i+1])]
    return L + [f"v_bitop3_b32 v{t}, v{t}, v{regs[-1]}, {mask} {NANDAND if ones else ORAND}", f"v_cmp_ne_u32 vcc, 0, v{t}"]

def f2u(x):
    import struct
    return struct.unpack("<I", struct.pack("<f", x))[0]

class VM:
    def __init__(self): self.n = 0; self.tags = {}
    def issue(self, tag=None, k=1):
        self.n += k
        if tag: self.tags[tag] = self.n
    def wait(self, tag):
        c = self.n - self.tags[tag]
        assert c <= 63, (tag, c)
        return f"s_waitcnt vmcnt({c})"

def gen(stamps=False, name=NAME + "_kernel", force_slow=False, SPIN=1 << 16, odepth=4, o0=3, orl=2, nomoe=False, noclr=False, hitA=False,
        lprio=1, owait=True, adeep=True, touch=True, clr_it=1, rs_it=(1, 3, 6), id_it=8, eg_it=(11, 13),
        moe_it=(6, 6, 6, 7, 7, 7, 8, 8, 8, 9, 9, 9, 10, 10, 10, 10, 11, 11, 11, 12, 12, 12, 12, 12), wo_plan=((13, 92, 9), (14, 52, 10), (15, 12, 10), (16, 0, 3)), e2b=False, tplan={17: 'SP', 19: 'Y'}, ntag=4, otag=3, cclr=(4, 4, 5, 5, 2), part=True, e3late=True, kvearly=0, pre=0, vsel=56, moehit=0, fl={}, rho=0, rot=0, wot=None, b1early=True, outtouch=False):
    A = Asm()
    if len(cclr) >= 4: otag = 0
    if len(cclr) >= 5: ntag = 0
    def sentchk(r): return [f"v_max3_u32 v2, v{r[0]}, v{r[1]}, v{r[2]}", f"v_max_u32 v2, v2, v{r[3]}", "v_cmp_eq_u32 vcc, -1, v2"]
    FL = dict(moe=" nt", out="", O=" sc1", Y=" sc1", wo="", B="", A="", t="", Old=" sc1", Yld=" sc1"); FL.update(fl)
    SX, SW, SWS, SWO, SOUT, SG, SU, SD, SWR = 4, 8, 12, 16, 20, 24, 28, 32, 36
    sWave, sRole, sXc, sJ, sG, sM, sWm, sWh, sTag, sFast = 60, 61, 62, 63, 64, 65, 66, 67, 68, 69
    sT, sT1, sT2, sT3 = 70, 71, 72, 73
    sKA, sKB, sM0A, sM0B, sSpin, sMoe = 74, 75, 76, 77, 78, 79
    sEps, sOne = 80, 82
    sWsum, sK1, sK2, sB0, sB1, sLog = 84, 85, 86, 87, 88, 90
    sRho = 89
    sMask = 92
    sC0, sC1 = 94, 95
    SREG = [96, 98, 100] + list(range(40, 60, 2))
    WSR = f"s[{SWS}:{SWS+3}]"
    out_of_line = []
    stamp_n = {"C": 0, "L": 0}
    stamp_names = {"C": [], "L": []}
    SETS = {True: "Cstart Cloop Ckv CE2 CO COok CE3 CST CE4 Cout CE5 Cend Lstart LF LE1 LE2 LE3 LE5 Lmoe Lend",
            "ml": "Cstart C0 C1 C2 C3 C4 C6 C8 C10 C12 C14 Cloop Ckv L00 Lstart La Lb L1 L2 L3 L4 L6 L9 L12 L14 LF",
            "m3": "C0 C1 C2 C3 C4 C5 C6 C7 C8 C10 C12 C14 Cloop Li1 Lw1 L1 Li2 Lw2 L2 Li3 Lw3 L3 Li4 Lw4 L4 Li5",
            "m4": "C5 C6 C7 C8 C9 C10 C11 C12 C13 C14 C15 Cloop Ckv Li11 Lw11 L11 Li12 Lw12 L12 Li13 Lw13 L13 Li14 Lw14 L14 LF",
            "g2": "CO COi COok Cg1 Cg2 Cg3 Cg4 Cg6 Cg8 Cg10 Cg12 Cg14 CE3 LF LFi LE1 Lk3 LE2 LE2b LE2i LE2c LE3",
            "t1": "CE3 CSTs CST CSTw CSTok CE4p CE4 Ccand Cout Crec CE5 Cend LE3 LE4p LE4 LE5p LE5 Lxok Lpxs Lpxok Lmoe Lyi Lyok LE7 Lend",
            "f1": "C15 Cloop Cex CE1 Ckv Cq CE2 CO COi COok LF LFi LE1 Lki Lk3 LE2",
            "m2": "C7 Cb7 Ca7 C8 Cb8 Ca8 C9 Cb9 Ca9 C10 L6 Li7 Lw7 L7 Li8 Lw8 L8 Li9 Lw9 L9"}
    def stamp(role, nm):
        if stamps and role + nm in SETS[stamps].split():
            i = stamp_n[role]; stamp_n[role] += 1
            stamp_names[role].append(nm)
            A(f"{'s_memtime' if stamps in ('m2', 'm3', 'm4', 'g2', 't1', 'f1') else 's_memrealtime'} s[{SREG[i]}:{SREG[i]+1}]")
    def dump_stamps(role):
        if not stamps: return
        A("s_mov_b64 exec, 1\ns_waitcnt lgkmcnt(0)")
        A(f"s_lshl_b32 s{sT}, s2, 3\ns_lshl_b32 s{sT1}, s{sRole}, 2\ns_add_u32 s{sT}, s{sT}, s{sT1}\ns_add_u32 s{sT}, s{sT}, s{sWave}\ns_lshl_b32 s{sT}, s{sT}, 6\ns_add_u32 s{sT}, s{sT}, {WS_DBG}")
        A("v_mov_b32 v2, 0")
        for i in range(stamp_n[role]):
            A(f"v_mov_b32 v3, s{SREG[i]}\nbuffer_store_dword v3, v2, {WSR}, s{sT} offen offset:{4*i}")
        A(f"v_mov_b32 v3, s{sSpin}\nbuffer_store_dword v3, v2, {WSR}, s{sT} offen offset:60")
    def retry(check, reload, lname):
        A(f"{lname}_chk:")
        for x in check: A(x)
        A(f"s_cbranch_vccnz {lname}_rt\n{lname}_ok:")
        out_of_line.append(f"{lname}_rt:\ns_add_u32 s{sSpin}, s{sSpin}, 1\ns_cmp_gt_u32 s{sSpin}, {SPIN}\ns_cbranch_scc1 {lname}_ok\n" +
                           "\n".join(reload) + f"\ns_waitcnt vmcnt(0)\ns_branch {lname}_chk")
    def retry2(check, reload, lname):
        A(f"s_cbranch_vccnz {lname}_rt\n{lname}_ok:")
        out_of_line.append(f"{lname}_rt:\ns_add_u32 s{sSpin}, s{sSpin}, 1\ns_cmp_gt_u32 s{sSpin}, {SPIN}\ns_cbranch_scc1 {lname}_ok\n" +
                           "\n".join(reload) + "\ns_waitcnt vmcnt(0)\n" + "\n".join(check) + f"\ns_cbranch_vccnz {lname}_rt\ns_branch {lname}_ok")
    def only(cond, loads, lname, undo=None):
        if not part: return loads
        return [f"{c}\n" + (undo[i] + "\n" if undo else "") + f"s_cbranch_vccz {lname}_p{i}\n{x}\n{lname}_p{i}:" for i, (c, x) in enumerate(zip(cond, loads))]
    def fast_slow(fn, lname):
        A(f"s_cmp_eq_u32 s{sFast}, 0\ns_cbranch_scc1 {lname}_s")
        for x in fn(""): A(x)
        A(f"{lname}_d:")
        out_of_line.append(f"{lname}_s:\n" + "\n".join(fn(" sc1")) + f"\ns_branch {lname}_d")

    hdr = open(os.path.join(os.path.dirname(os.path.abspath(__file__)), "..", NAME + ".s.ref")).read().split("\n")
    for l in hdr:
        if l.startswith("; @launch"): break
        A(l)
    A("; @launch grid=(256,1,1) block=(512,1,1) lds=163840")
    A('.amdgcn_target "amdgcn-amd-amdhsa--gfx950"\n.text')
    kernel_begin(A, name)
    A("s_cmp_ge_u32 s2, 256\ns_cbranch_scc1 L_end")
    A("s_load_dwordx16 s[40:55], s[0:1], 0\ns_load_dwordx2 s[56:57], s[0:1], 64\ns_load_dwordx2 s[58:59], s[0:1], 80")
    A(f"v_lshrrev_b32 v2, 6, v0\nv_and_b32 v1, 63, v0\nv_readfirstlane_b32 s{sWave}, v2")
    A(f"s_and_b32 s{sXc}, s2, 7\ns_lshr_b32 s{sJ}, s2, 3\ns_lshl_b32 s{sG}, s{sXc}, 1\ns_and_b32 s{sT}, s{sJ}, 1\ns_add_u32 s{sG}, s{sG}, s{sT}\ns_lshr_b32 s{sM}, s{sJ}, 1")
    A(f"s_lshl_b32 s{sMoe}, s{sG}, 4\ns_add_u32 s{sMoe}, s{sMoe}, s{sM}")
    A(f"s_mov_b32 s{sSpin}, 0")
    A(f"s_lshl_b32 s{sT}, s{sT}, 3\ns_add_u32 s{sRho}, s{sM}, s{sT}\ns_and_b32 s{sRho}, s{sRho}, 15" if rho else f"s_mov_b32 s{sRho}, s{sM}")
    A(f"s_lshr_b32 s{sRole}, s{sWave}, 2\ns_and_b32 s{sWave}, s{sWave}, 3")
    A(f"s_lshr_b32 s{sWm}, s{sWave}, 1\ns_and_b32 s{sWh}, s{sWave}, 1")
    A(f"v_lshlrev_b32 v16, 4, v1")
    A(f"s_cmp_eq_u32 s{sRole}, 0\ns_cbranch_scc1 L_compute")

    vm = VM()
    vAld, vBld = 8, 12
    vL16 = 18
    stamp("L", "00")
    if lprio: A(f"s_setprio {lprio}")
    A(f"v_mov_b32 v{vL16}, v16")
    A(f"s_lshl_b32 s{sT}, s{sM}, 2\ns_add_u32 s{sT}, s{sT}, s{sWave}\ns_lshl_b32 s{sT}, s{sT}, 16")
    A(f"v_lshrrev_b32 v2, 3, v1\nv_lshlrev_b32 v5, 11, v2\nv_add_u32 v5, s{sT}, v5")
    A(f"v_lshrrev_b32 v3, 4, v1\nv_and_b32 v4, 7, v1\nv_xor_b32 v3, v3, v4")
    for j in range(4):
        A(f"v_xor_b32 v6, {4*(j&1)}, v3\nv_lshl_add_u32 v6, v6, 4, v5\nv_add_u32 v{vAld+j}, {j*8*2048 - 1024*j}, v6")
    A(f"s_lshl_b32 s{sT}, s{sWave}, 4\nv_add_u32 v5, s{sT}, v2\nv_mul_u32_u24 v5, 6144, v5\ns_lshl_b32 s{sT}, s{sG}, 7\nv_add_u32 v5, s{sT}, v5")
    A(f"v_bfe_u32 v3, v1, 4, 1\nv_lshlrev_b32 v3, 1, v3\nv_xor_b32 v3, v3, v4")
    for p in range(3):
        for u in range(2):
            idx = p*2 + u
            A(f"v_xor_b32 v6, {4*u}, v3\nv_lshl_add_u32 v6, v6, 4, v5\nv_add_u32 v{vBld+idx}, {p*2048 + u*8*6144 - 1024*(idx&3)}, v6")
    A(f"s_lshl_b32 s{sM0A}, s{sWave}, 12\ns_mul_i32 s{sM0B}, s{sWave}, 6144")
    A(f"s_and_b32 s{sT}, s{sG}, 1\ns_lshl_b32 s{sT}, s{sT}, 3\n" + {0: f"s_mov_b32 s{sT}, 0", 1: "", 2: f"s_add_u32 s{sT}, s{sT}, s{sXc}",
      3: f"s_and_b32 s{sT1}, s{sXc}, 1\ns_lshl_b32 s{sT1}, s{sT1}, 2\ns_add_u32 s{sT}, s{sT}, s{sT1}", 4: f"s_and_b32 s{sT1}, s{sXc}, 3\ns_lshl_b32 s{sT1}, s{sT1}, 1\ns_add_u32 s{sT}, s{sT}, s{sT1}"}[rot])
    A(f"s_add_u32 s{sT}, s{sT}, s{sM}\ns_and_b32 s{sT}, s{sT}, 15\ns_mul_i32 s{sKB}, s{sT}, {64*6144}\ns_lshl_b32 s{sKA}, s{sT}, 7")
    A("s_waitcnt lgkmcnt(0)")
    srd(A, SX, 40, 41, 2048*1024*2)
    srd(A, SW, 42, 43, 1024*3072*2)
    def emit(it):
        x, n, tag = it
        if callable(x): x()
        else: A(x)
        if n: vm.issue(tag, n)
    def V(x): return [(l, 0, None) for l in x.split("\n")]
    def AT(x, n=0, tag=None): return [(x, n, tag)]
    def dmaA(st):
        L = []
        for j in range(4):
            pre = f"s_add_u32 m0, s{sM0A}, {LA[st % 4]}\n" if j == 0 else ""
            post = f"\ns_add_u32 s{sKA}, s{sKA}, 128\ns_and_b32 s{sKA}, s{sKA}, 2047" if j == 3 else ""
            L += AT(pre + f"buffer_load_dwordx4 v{vAld+j}, s[{SX}:{SX+3}], {0 if hitA else 's%d' % sKA} offen offset:{1024*j}{FL['A']} lds" + post, 1, f"A{st}")
        return L
    def dmaB(st):
        L = []
        for idx in range(6):
            pre = f"s_add_u32 m0, s{sM0B}, {LB[st % 3] + (idx//4)*4096}\n" if idx % 4 == 0 else ""
            post = f"\ns_add_u32 s{sKB}, s{sKB}, {64*6144}\ns_cmp_eq_u32 s{sKB}, {1024*6144}\ns_cselect_b32 s{sKB}, 0, s{sKB}" if idx == 5 else ""
            L += AT(pre + f"buffer_load_dwordx4 v{vBld+idx}, s[{SW}:{SW+3}], s{sKB} offen offset:{1024*(idx&3)}{FL['B']} lds" + post, 1, f"B{st}")
        return L
    for it in dmaA(0) + dmaB(0) + dmaA(1) + (dmaB(1) if b1early else []): emit(it)
    srd(A, SWS, 58, 59, 256 << 20)
    srd(A, SWO, 44, 45, 1024*1024*2)
    srd(A, SOUT, 56, 57, 2048*1024*2)
    srd(A, SG, 50, 51, 1024*3584*2)
    srd(A, SU, 52, 53, 1024*3584*2)
    srd(A, SD, 54, 55, 3584*1024*2)
    if stamps in ("t1", "f1"):
        for r in SREG: A(f"s_mov_b32 s{r}, 0")
    stamp("L", "start")
    vRow, vU, vWo, vNeg = 20, 36, 80, 72
    vGU, vWD, vT = 76, 77, 79
    sRow, sGU, sWD, sKv, sOo, sWoS = sB0, sK1, sK2, sEps, sEps + 1, sOne
    A(f"s_lshl_b32 s{sT}, s{sM}, 7\ns_lshl_b32 s{sT1}, s{sG}, 3\ns_add_u32 s{sT}, s{sT}, s{sT1}\ns_lshl_b32 s{sT1}, s{sWave}, 1\ns_add_u32 s{sRow}, s{sT}, s{sT1}")
    A(f"v_lshrrev_b32 v2, 3, v1\nv_lshlrev_b32 v3, 11, v2\nv_bfe_u32 v5, v1, 4, 2\nv_lshlrev_b32 v5, 1, v5\nv_and_b32 v4, 7, v1\nv_xor_b32 v5, v5, v4\nv_lshl_add_u32 v3, v5, 4, v3")
    A(f"s_lshl_b32 s{sT}, s{sM}, 7\nv_add_u32 v{vWo}, s{sT}, v3")
    for e in range(4): A(f"v_mov_b32 v{vNeg+e}, -1")
    A(f"s_mul_i32 s{sKv}, s{sMoe}, {KVS}\ns_add_u32 s{sKv}, s{sKv}, {WS_KV}")
    A(f"s_lshl_b32 s{sOo}, s{sM}, 18\ns_lshl_b32 s{sT}, s{sWm}, 17\ns_add_u32 s{sOo}, s{sOo}, s{sT}\ns_lshl_b32 s{sT}, s{sG}, 11\ns_add_u32 s{sOo}, s{sOo}, s{sT}\ns_lshl_b32 s{sT}, s{sWh}, 10\ns_add_u32 s{sOo}, s{sOo}, s{sT}\ns_add_u32 s{sOo}, s{sOo}, {WS_O}")
    A(f"v_mul_u32_u24 v{vGU}, 7168, v2\nv_lshl_add_u32 v{vGU}, v4, 4, v{vGU}")
    A(f"v_lshrrev_b32 v2, 4, v1\nv_and_b32 v3, 15, v1\nv_lshlrev_b32 v{vWD}, 13, v2\nv_lshl_add_u32 v{vWD}, v3, 4, v{vWD}\nv_add_u32 v{vWD+1}, 4096, v{vWD}")
    A(f"s_and_b32 s{sT}, s{sM}, 3\ns_lshl_b32 s{sT}, s{sT}, 2\ns_add_u32 s{sT}, s{sT}, s{sWave}\ns_mul_i32 s{sGU}, s{sT}, {64*7168}\ns_lshr_b32 s{sT}, s{sMoe}, 2\ns_lshl_b32 s{sT}, s{sT}, 7\ns_add_u32 s{sGU}, s{sGU}, s{sT}")
    A(f"s_lshl_b32 s{sWD}, s{sMoe}, 15\ns_lshl_b32 s{sT}, s{sWave}, 9\ns_add_u32 s{sWD}, s{sWD}, s{sT}")
    if moehit == 1: A(f"s_mul_i32 s{sGU}, s{sWave}, {64*7168}\ns_lshl_b32 s{sWD}, s{sWave}, 9")
    if moehit == 2: A(f"s_lshl_b32 s{sT}, s{sM}, 7\ns_mul_i32 s{sGU}, s{sWave}, {64*7168}\ns_add_u32 s{sGU}, s{sGU}, s{sT}\ns_lshl_b32 s{sWD}, s{sM}, 15\ns_lshl_b32 s{sT}, s{sWave}, 9\ns_add_u32 s{sWD}, s{sWD}, s{sT}")
    A(f"s_cmp_lt_u32 s{sG}, 14\ns_cselect_b32 s{SG+2}, s{SG+2}, 0\ns_cselect_b32 s{SU+2}, s{SU+2}, 0\ns_cselect_b32 s{SD+2}, s{SD+2}, 0")
    sLsb, sFF, vM, sTagB = sLog, sLog + 1, 82, sWsum
    A(f"s_mov_b32 s{sLsb}, 0x10001\ns_movk_i32 s{sFF}, 0xff\nv_mov_b32 v{vT}, 0")
    def tl(lane, x, v=vT): A(x + f"\nv_writelane_b32 v{v}, s{sT}, {lane}")
    tl(0, f"s_lshl_b32 s{sT}, s{sRow}, 4\ns_add_u32 s{sT}, s{sT}, {WS_RS}")
    tl(1, f"s_lshl_b32 s{sT}, s{sMoe}, 4\ns_add_u32 s{sT}, s{sT}, {WS_IDR}")
    tl(2, f"s_lshl_b32 s{sT}, s{sG}, 7\ns_add_u32 s{sT}, s{sT}, {WS_REC}")
    tl(3, f"s_lshl_b32 s{sT}, s{sMoe}, 10\ns_add_u32 s{sT}, s{sT}, {WS_CS}")
    aKV = f"s_lshl_b32 s{sT}, s{sWave}, 10\ns_add_u32 s{sT}, s{sT}, s{sKv}"
    aZ = f"s_lshl_b32 s{sT}, s{sWh}, 7\ns_add_u32 s{sT}, s{sT}, s{sKv}\ns_add_u32 s{sT}, s{sT}, 4096"
    aYP = f"s_lshl_b32 s{sT1}, s{sMoe}, 2\ns_add_u32 s{sT1}, s{sT1}, s{sWave}\ns_lshl_b32 s{sT}, s{sT1}, 11\ns_add_u32 s{sT}, s{sT}, {WS_YP}"
    aST = f"s_lshl_b32 s{sT1}, s{sMoe}, 2\ns_add_u32 s{sT1}, s{sT1}, s{sWave}\ns_lshl_b32 s{sT}, s{sT1}, 9\ns_add_u32 s{sT}, s{sT}, {WS_ST}"
    aPX = f"s_and_b32 s{sT1}, s{sM}, 3\ns_sub_u32 s{sT}, s{sMoe}, s{sT1}\ns_add_u32 s{sT}, s{sT}, s{sWave}\ns_lshl_b32 s{sT}, s{sT}, 2\ns_add_u32 s{sT}, s{sT}, s{sT1}\ns_lshl_b32 s{sT}, s{sT}, 8\ns_add_u32 s{sT}, s{sT}, {WS_PX}"
    vT2 = 83
    tl(4, aKV); tl(5, aZ); tl(6, aYP); tl(7, aST); tl(8, aPX)
    for rb in range(4): tl(9 + rb, f"s_add_u32 s{sT}, s{sOo}, {rb*32768}")
    if tplan:
        A(f"v_and_b32 v2, 7, v1\nv_lshlrev_b32 v2, 7, v2\nv_lshrrev_b32 v3, 3, v1\nv_lshl_add_u32 v{vT2}, v3, 15, v2\nv_add_u32 v{vT2}, s{sOo}, v{vT2}\ns_mov_b32 exec_lo, 0")
        for (mask, n, a) in ((0xffff, 15, aYP), (0xff0000, 7, aKV), (0xf000000, 3, aST), (0x30000000, 1, aPX), (0xc0000000, 0, aZ)):
            A(a + f"\ns_mov_b32 exec_hi, {hex(mask)}\nv_and_b32 v2, {n}, v1\nv_lshl_add_u32 v{vT2}, v2, 7, s{sT}")
        A("s_mov_b64 exec, -1")
    TM = {"O": 0xffffffff, "Y": 0xffff << 32, "K": 0xc0ff << 48, "S": 0xf << 56, "P": 0x3 << 60}
    def touches(k):
        if k not in tplan: return []
        m = sum(TM[c] for c in tplan[k])
        return AT(f"s_mov_b32 exec_lo, {hex(m & 0xffffffff)}\ns_mov_b32 exec_hi, {hex(m >> 32)}\nbuffer_load_dword v81, v{vT2}, {WSR}, 0 offen{FL['t']}\ns_mov_b64 exec, -1", 1)
    A(vm.wait("B0") + "\ns_barrier")
    stamp("L", "a")
    for it in ([] if b1early else dmaB(1)) + dmaA(2) + dmaB(2) + (dmaA(3) if adeep else []): emit(it)
    A(vm.wait("B1") + "\ns_barrier")
    stamp("L", "b")
    side = {k: [] for k in range(1, 16)}
    extra = {k: [] for k in range(1, 16)}
    late = {k: [] for k in range(1, 16)}
    extra[rs_it[0]] += AT(f"v_mov_b32 v2, 0\nbuffer_load_dword v19, v2, {WSR}, 0 offen sc1", 1)
    for q in range(4): extra[rs_it[0]] += AT(f"s_lshl_b32 s{sT}, s{sRow}, 11\nbuffer_load_dwordx4 {vr(vRow+4*q, 4)}, v{vL16}, s[{SX}:{SX+3}], s{sT} offen offset:{1024*q}", 1, "rs")
    if touch: extra[rs_it[0]] += AT(f"s_mov_b64 exec, 0x1fff\nbuffer_load_dword v81, v{vT}, {WSR}, 0 offen\ns_mov_b64 exec, -1", 1)
    for k in range(1, 16): extra[k] += touches(k)
    if outtouch: extra[outtouch] += AT(f"v_lshlrev_b32 v81, 14, v1\ns_lshl_b32 s{sT}, s{sG}, 2\ns_add_u32 s{sT}, s{sT}, s{sWave}\ns_lshl_b32 s{sT}, s{sT}, 16\ns_lshl_b32 s{sT1}, s{sM}, 7\ns_add_u32 s{sT}, s{sT}, s{sT1}\ns_mov_b64 exec, 15\nbuffer_load_dword v81, v81, s[{SOUT}:{SOUT+3}], s{sT} offen\ns_mov_b64 exec, -1", 1)
    if wot:
        extra[wot] += AT(f"v_and_b32 v81, 15, v1\nv_lshlrev_b32 v81, 11, v81\ns_lshl_b32 s{sT}, s{sG}, 2\ns_add_u32 s{sT}, s{sT}, s{sWave}\ns_lshl_b32 s{sT}, s{sT}, 15\ns_lshl_b32 s{sT1}, s{sM}, 7\ns_add_u32 s{sT}, s{sT}, s{sT1}\n"
                         f"s_mov_b64 exec, 0xffff\nbuffer_load_dword v81, v81, s[{SWO}:{SWO+3}], s{sT} offen\ns_mov_b64 exec, -1", 1)
    def wave_sum2(a, b):
        L = []
        for k in (1, 2, 4, 8):
            L += V(f"v_add_f32_dpp v{a}, v{a}, v{a} row_ror:{k} row_mask:0xf bank_mask:0xf\nv_add_f32_dpp v{b}, v{b}, v{b} row_ror:{k} row_mask:0xf bank_mask:0xf")
        for sw in ("16", "32"):
            L += V(f"v_mov_b32 v6, v{a}\nv_mov_b32 v7, v{b}\nv_permlane{sw}_swap_b32 v{a}, v6\nv_permlane{sw}_swap_b32 v{b}, v7\nv_add_f32 v{a}, v{a}, v6\nv_add_f32 v{b}, v{b}, v7")
        return L
    R = AT(lambda: A(vm.wait("rs")))
    R += AT(f"v_readfirstlane_b32 s{sTag}, v19\ns_add_u32 s{sTag}, s{sTag}, 1")
    R += AT(f"s_and_b32 s{sTagB}, s{sTag}, 0xff\ns_not_b32 s{sT}, s{sTag}\nv_and_b32 v{vM}, 3, v1\nv_lshrrev_b32_e64 v{vM}, v{vM}, s{sT}") + V(f"v_and_b32 v{vM}, 1, v{vM}\nv_mul_u32_u24 v{vM}, 0x10001, v{vM}")
    for q in range(16): R += V(f"v_lshlrev_b32 v{vU+2*q}, 16, v{vRow+q}\nv_and_b32 v{vU+2*q+1}, 0xffff0000, v{vRow+q}")
    for q in range(4):
        for i in range(2): R += V(f"v_add_f32 v{vRow+8*i+q}, v{vU+16*i+q}, v{vU+16*i+4+q}")
    for k in (8, 12):
        for q in range(4):
            for i in range(2): R += V(f"v_add_f32 v{vRow+8*i+q}, v{vRow+8*i+q}, v{vU+16*i+k+q}")
    for i in range(2): R += V(f"v_add_f32 v{vRow+8*i}, v{vRow+8*i}, v{vRow+8*i+1}\nv_add_f32 v{vRow+8*i+2}, v{vRow+8*i+2}, v{vRow+8*i+3}")
    for i in range(2): R += V(f"v_add_f32 v{2+2*i}, v{vRow+8*i}, v{vRow+8*i+2}")
    R += wave_sum2(2, 4)
    R += V(f"v_mul_f32 v2, {hex(f2u(-1.0/1024))}, v2\nv_mul_f32 v4, {hex(f2u(-1.0/1024))}, v4")
    for q in range(16):
        for i in range(2): R += V(f"v_add_f32 v{vU+16*i+q}, v{vU+16*i+q}, v{2+2*i}")
    for q in range(16):
        for i in range(2):
            b = vU + 16*i + q; t = vRow + 8*i + (q & 1)
            R += V(f"v_mul_f32 v{t}, v{b}, v{b}" if q < 2 else f"v_fmac_f32 v{t}, v{b}, v{b}")
    for i in range(2): R += V(f"v_add_f32 v{3+2*i}, v{vRow+8*i}, v{vRow+8*i+1}")
    R += wave_sum2(3, 5)
    R += V(f"v_mov_b32 v6, {hex(f2u(1e-5))}\nv_fmac_f32 v6, {hex(f2u(1.0/1024))}, v3\nv_rsq_f32 v3, v6\nv_mov_b32 v6, {hex(f2u(1e-5))}\nv_fmac_f32 v6, {hex(f2u(1.0/1024))}, v5\nv_rsq_f32 v5, v6")
    R += V(f"v_cmp_eq_u32 vcc, 1, v1\nv_cndmask_b32 v20, v2, v4, vcc\nv_cndmask_b32 v21, v3, v5, vcc\nv_mov_b32 v22, 0\nv_mov_b32 v23, s{sTag}")
    def spread(L, k0, k1):
        n = k1 - k0 + 1; per = -(-len(L) // n)
        for i in range(n): side[k0 + i] += L[i*per:(i+1)*per]
    spread(R, rs_it[1], rs_it[2])
    late[rs_it[2]] += AT(f"s_lshl_b32 s{sT}, s{sRow}, 4\ns_add_u32 s{sT}, s{sT}, {WS_RS}\ns_mov_b64 exec, 3\nbuffer_store_dwordx4 v[20:23], v{vL16}, {WSR}, s{sT} offen sc1\ns_mov_b64 exec, -1", 1)
    NG = vr(vNeg, 4)
    clr = (f"s_lshl_b32 s{sT}, s{sG}, 12\ns_lshl_b32 s{sT1}, s{sWm}, 11\ns_add_u32 s{sT}, s{sT}, s{sT1}\ns_lshl_b32 s{sT1}, s{sM}, 7\ns_add_u32 s{sT}, s{sT}, s{sT1}\ns_lshl_b32 s{sT1}, s{sWh}, 6\ns_add_u32 s{sT}, s{sT}, s{sT1}\ns_add_u32 s{sT}, s{sT}, {WS_CSEG}\n"
           f"s_mov_b64 exec, 0xf\nbuffer_store_dwordx4 {NG}, v{vL16}, {WSR}, s{sT} offen sc1\ns_mov_b64 exec, -1")
    if not noclr: extra[clr_it] += AT(clr, 1)
    assert id_it > rs_it[1]
    side[id_it] += AT(f"s_getreg_b32 s{sT1}, hwreg(HW_REG_XCC_ID, 0, 4)\nv_mov_b32 v84, s{sT1}") + V(f"v_mov_b32 v85, 0\nv_mov_b32 v86, 0\nv_mov_b32 v87, s{sTag}")
    late[id_it] += AT(f"s_lshl_b32 s{sT}, s{sMoe}, 4\ns_add_u32 s{sT}, s{sT}, {WS_IDR}\ns_mov_b64 exec, 1\nbuffer_store_dwordx4 v[84:87], v{vL16}, {WSR}, s{sT} offen sc1\ns_mov_b64 exec, -1", 1)
    vCS, vRG, vID = 20, 36, 40
    sCs, sRg = sB0, sB1
    assert eg_it[0] > rs_it[2]
    egl = [f"s_add_u32 s{sT}, s{sCs}, {j*4096}\nbuffer_load_dwordx4 {vr(vCS+4*j, 4)}, v44, {WSR}, s{sT} offen sc1" for j in range(4)]
    egl += [f"buffer_load_dwordx4 {vr(vRG, 4)}, v45, {WSR}, s{sRg} offen sc1", f"buffer_load_dwordx4 {vr(vID, 4)}, v46, {WSR}, 0 offen offset:0 sc1"]
    E = V(f"v_lshrrev_b32 v2, 4, v1\nv_and_b32 v3, 15, v1\nv_lshlrev_b32 v44, 10, v2\nv_lshl_add_u32 v44, v3, 4, v44") + AT(f"s_lshl_b32 s{sT}, s{sWave}, 8\nv_add_u32 v44, s{sT}, v44")
    E += AT(f"s_lshl_b32 s{sCs}, s{sG}, 14\ns_add_u32 s{sCs}, s{sCs}, {WS_CS}") + V(f"v_and_b32 v45, 31, v1\nv_lshlrev_b32 v45, 4, v45")
    E += AT(f"s_lshl_b32 s{sRg}, s{sM}, 11\ns_lshl_b32 s{sT}, s{sWave}, 9\ns_add_u32 s{sRg}, s{sRg}, s{sT}\ns_add_u32 s{sRg}, s{sRg}, {WS_RS}")
    E += AT(f"s_lshl_b32 s{sT}, s{sG}, 8\ns_add_u32 s{sT}, s{sT}, {WS_IDR}\nv_lshlrev_b32 v4, 4, v3\nv_add_u32 v4, s{sT}, v4")
    E += AT(f"s_lshl_b32 s{sT}, s{sG}, 4\ns_add_u32 s{sT}, s{sT}, {WS_IDR}\nv_lshlrev_b32 v5, 8, v3\nv_add_u32 v5, s{sT}, v5")
    E += V(f"v_and_b32 v6, 1, v2\nv_cmp_eq_u32 vcc, 1, v6\nv_cndmask_b32 v46, v4, v5, vcc")
    side[eg_it[0]] += E
    for x in egl: extra[eg_it[0]] += AT(x, 1, "eg")
    chk = [f"v_xor_b32 v2, s{sTag}, v{vCS+3}", f"v_xor_b32 v3, s{sTag}, v{vCS+7}", f"v_xor_b32 v4, s{sTag}, v{vCS+11}",
           f"v_or3_b32 v2, v2, v3, v4", f"v_xor_b32 v3, s{sTag}, v{vCS+15}", f"v_xor_b32 v4, s{sTag}, v{vRG+3}",
           f"v_or3_b32 v2, v2, v3, v4", f"v_xor_b32 v3, s{sTag}, v{vID+3}", f"v_or_b32 v2, v2, v3", "v_cmp_ne_u32 vcc, 0, v2"]
    def egchk(): A(vm.wait("eg")); retry(chk, egl, "L_eg")
    E = AT(egchk)
    for e in range(3): E += V(f"v_add_f32 v{vCS+e}, v{vCS+e}, v{vCS+4+e}\nv_add_f32 v{vCS+8+e}, v{vCS+8+e}, v{vCS+12+e}")
    for e in range(3): E += V(f"v_add_f32 v{vCS+e}, v{vCS+e}, v{vCS+8+e}")
    for sw in ("16", "32"):
        for e in range(3): E += V(f"v_mov_b32 v{vCS+4+e}, v{vCS+e}")
        for e in range(3): E += V(f"v_permlane{sw}_swap_b32 v{vCS+e}, v{vCS+4+e}")
        for e in range(3): E += V(f"v_add_f32 v{vCS+e}, v{vCS+e}, v{vCS+4+e}")
    E += V(f"v_and_b32 v3, 15, v1\nv_lshlrev_b32 v3, 2, v3") + AT(f"s_lshl_b32 s{sT}, s{sWave}, 6\ns_add_u32 s{sT}, s{sT}, {L_CSUM}\nv_add_u32 v3, s{sT}, v3")
    for e in range(3): E += V(f"ds_write_b32 v3, v{vCS+e} offset:{256*e}")
    E += V(f"v_lshrrev_b32 v4, 2, v45") + AT(f"s_lshl_b32 s{sT}, s{sWave}, 7\ns_add_u32 s{sT}, s{sT}, {L_NM}\nv_add_u32 v4, s{sT}, v4")
    E += V(f"ds_write_b32 v4, v{vRG}\nds_write_b32 v4, v{vRG+1} offset:512")
    E += AT(f"s_getreg_b32 s{sT1}, hwreg(HW_REG_XCC_ID, 0, 4)\nv_cmp_ne_u32 vcc, s{sT1}, v{vID}\ns_and_b32 s{sT}, vcc_lo, 0xffff\ns_cselect_b32 s{sFast}, 0, {0 if force_slow else 1}")
    E += V(f"v_mov_b32 v5, s{sFast}\nv_mov_b32 v6, {L_FAST}\nds_write_b32 v6, v5")
    spread(E, eg_it[1], 14)
    moe = []
    for i in range(8):
        for mat in range(2):
            srdx = SU if mat else SG
            moe.append(f"buffer_load_dwordx4 {ar(mat*32 + i*4, 4)}, v{vGU}, s[{srdx}:{srdx+3}], s{sGU} offen{FL['moe']}" + (f"\ns_add_u32 s{sGU}, s{sGU}, {8*7168}" if mat else ""))
    vWDr, vWDf = 84, 116
    wdlate = moe_it[16] == 19
    assert max(moe_it[:16]) < 19 and (wdlate or moe_it[23] < 19)
    for a in range(2):
        for jj in range(4): moe.append(f"buffer_load_dwordx4 {vr(vWDr + a*16 + jj*4, 4) if wdlate else ar(64 + a*16 + jj*4, 4)}, v{vWD + (jj >> 1)}, s[{SD}:{SD+3}], s{sWD} offen offset:{(jj & 1)*2048 + a*256}{FL['moe']}")
    moe_post = {}
    assert len(moe_it) == 24 and list(moe_it) == sorted(moe_it)
    for k, x in zip(moe_it, moe):
        if nomoe: continue
        if k <= 15: extra[k] += AT(x, 1)
        else: moe_post.setdefault(k, []).append(x)
    def moe_loads(k):
        for x in moe_post.get(k, []): emit((x, 1, None))
    def wo_piece(q0, n):
        L = []
        for i in range(n):
            pre = f"s_add_u32 m0, m0, 1024\ns_add_u32 s{sWoS}, s{sWoS}, 16384\ns_and_b32 s{sWoS}, s{sWoS}, 0x1fffff\n"
            if i == 0: pre = (f"s_mul_i32 s{sT}, s{sWave}, {n}\ns_add_u32 s{sT}, s{sT}, {q0}\ns_lshl_b32 s{sWoS}, s{sRho}, 3\ns_add_u32 s{sWoS}, s{sWoS}, s{sT}\ns_lshl_b32 s{sT}, s{sT}, 10\ns_add_u32 m0, s{sT}, {L_WO}\n"
                              f"s_and_b32 s{sWoS}, s{sWoS}, 127\ns_lshl_b32 s{sWoS}, s{sWoS}, 14\n")
            L += AT(pre + f"buffer_load_dwordx4 v{vWo}, s[{SWO}:{SWO+3}], s{sWoS} offen{FL['wo']} lds", 1, "wo")
        return L
    assert sorted(q for (k, q0, n) in wo_plan for q in range(q0, q0 + 4*n)) == list(range(128))
    for (k, q0, n) in wo_plan: assert q0 >= {13: 92, 14: 52, 15: 12, 16: 0, 17: 8}[k]
    e2c = min([q0 // 8 for (k, q0, n) in wo_plan if k == 17], default=0)
    assert e2b or not e2c
    def wo_at(k): return sum([wo_piece(q0, n) for (kk, q0, n) in wo_plan if kk == k], [])
    for st in range(1, 16):
        ops = []
        if not adeep and st + 2 < 16: ops += dmaA(st + 2)
        if st + 2 < 16: ops += dmaB(st + 2)
        if adeep and st + 3 < 16: ops += dmaA(st + 3)
        ops += wo_at(st)
        if len(ops) < 4: ops += extra[st]; extra[st] = []
        if not ops: ops = AT("")
        sd = side[st]; per = -(-len(sd) // len(ops))
        for i, o in enumerate(ops):
            emit(o)
            for x in sd[i*per:(i+1)*per]: emit(x)
        for x in extra[st] + late[st]: emit(x)
        if pre and st == pre: A("s_waitcnt vmcnt(0)")
        if st == 15: break
        stamp("L", f"i{st}")
        A(vm.wait(f"B{st+1}"))
        stamp("L", f"w{st}")
        A("s_barrier")
        stamp("L", str(st))
    if lprio: A("s_setprio 0")
    A("s_waitcnt lgkmcnt(0)\ns_barrier")
    stamp("L", "F")
    for x in touches(16): emit(x)
    moe_loads(16)
    for x in wo_at(16): emit(x)
    A(f"s_sub_i32 s{sT}, s{sG}, s{sM}\ns_lshl_b32 s{sT}, s{sT}, 18")
    for j in range(4): A(f"v_add_u32 v{vAld+j}, s{sT}, v{vAld+j}")
    A(f"s_lshl_b32 s{sT}, s{sM}, 7\ns_mov_b32 m0, s{sM0A}")
    for j in range(4): emit((f"buffer_load_dwordx4 v{vAld+j}, s[{SX}:{SX+3}], s{sT} offen offset:{1024*j} lds", 1, None))
    vSel = vsel
    A(f"v_lshrrev_b32 v2, 4, v1\nv_bfe_u32 v3, v1, 2, 2\nv_and_b32 v4, 1, v1\nv_lshlrev_b32 v4, 4, v4\nv_mov_b32 v5, 0x3f80\nv_lshlrev_b32 v4, v4, v5")
    A(f"v_cmp_eq_u32 vcc, v2, v3\nv_cndmask_b32 v4, 0, v4, vcc\nv_and_b32 v5, 2, v1\nv_cmp_eq_u32 vcc, 0, v5")
    A(f"v_cndmask_b32 v{vSel+2}, 0, v4, vcc\nv_cndmask_b32 v{vSel+3}, v4, 0, vcc" if False else
      f"v_cndmask_b32 v{vSel+2}, 0, v4, vcc\nv_cndmask_b32_e64 v{vSel+3}, v4, 0, vcc")
    A(f"v_mov_b32 v{vSel}, 0\nv_mov_b32 v{vSel+1}, 0\nv_mov_b32 v{vSel+4}, 0\nv_mov_b32 v{vSel+5}, 0")
    vP, vZ, vZa = 84, 148, 55
    A(f"v_and_b32 v3, 15, v1\nv_mul_u32_u24 v{vZa}, {KVS}, v3\nv_lshrrev_b32 v2, 4, v1\nv_lshl_add_u32 v{vZa}, v2, 5, v{vZa}")
    A(f"s_mul_i32 s{sB0}, s{sG}, {16*KVS}\ns_add_u32 s{sB0}, s{sB0}, {WS_KV}")
    A(f"s_lshl_b32 s{sT}, s{sWm}, 7\ns_lshl_b32 s{sT1}, s{sWh}, 4\ns_add_u32 s{sB1}, s{sT}, s{sT1}\ns_add_u32 s{sB1}, s{sB1}, s{sB0}\ns_add_u32 s{sB1}, s{sB1}, 4096")
    A(f"s_lshl_b32 s{sT}, s{sWave}, 10\ns_add_u32 s{sB0}, s{sB0}, s{sT}")
    def kv_load(i):
        return [f"s_add_u32 s{sT}, s{sM}, {i+1}\ns_and_b32 s{sT}, s{sT}, 15\ns_mul_i32 s{sT}, s{sT}, {KVS}\ns_add_u32 s{sT}, s{sT}, s{sB0}",
                f"buffer_load_dwordx4 {vr(vP+4*i, 4)}, v{vL16}, {WSR}, s{sT} offen sc1"]
    z_load = [f"buffer_load_dwordx4 {vr(vZ, 4)}, v{vZa}, {WSR}, s{sB1} offen sc1"]
    for i in range(16):
        if i == kvearly:
            stamp("L", "Fi")
            A("s_barrier")
            stamp("L", "E1")
        for x in kv_load(i): A(x)
        vm.issue(f"kv{i}")
    for x in z_load: A(x)
    vm.issue("z")
    stamp("L", "ki")
    vD, sOpen = 20, sT3
    A(f"s_lshl_b32 s{sT}, s{sWm}, 6\ns_lshl_b32 s{sT1}, s{sWh}, 3\ns_add_u32 s{sT}, s{sT}, s{sT1}\ns_add_u32 s{sT}, s{sT}, {L_ZF}\nv_lshrrev_b32 v4, 4, v1\nv_lshlrev_b32 v4, 4, v4\nv_add_u32 v4, s{sT}, v4")
    A(f"s_lshl_b32 s{sT}, s{sWave}, 10\ns_add_u32 s{sT}, s{sT}, {L_KVF}\nv_add_u32 v3, s{sT}, v{vL16}")
    A(f"s_mov_b32 s{sOpen}, 31\nL_kvr:")
    rl = [f"L_kvrt:\ns_add_u32 s{sSpin}, s{sSpin}, 1\ns_cmp_gt_u32 s{sSpin}, {SPIN}\ns_cbranch_scc1 L_kvok"]
    for c in range(4):
        r = [vP + 16*c + 4*i for i in range(4)]
        A(f"s_bitcmp1_b32 s{sOpen}, {c}\ns_cbranch_scc0 L_kvs{c}\n" + vm.wait(f"kv{4*c+3}"))
        for x in tagchk([q + e for q in r for e in range(ntag)], f"v{vM}", f"s{sLsb}", True) if ntag else sentchk(r): A(x)
        A(f"s_cbranch_vccnz L_kvs{c}\ns_bitset0_b32 s{sOpen}, {c}")
        for i in range(4):
            A(f"v_mfma_f32_16x16x32_bf16 {vr(vD+8*c, 4)}, {vr(vSel+2, 4)}, {vr(r[i], 4)}, {0 if i == 0 else vr(vD+8*c, 4)}")
            A(f"v_mfma_f32_16x16x32_bf16 {vr(vD+8*c+4, 4)}, {vr(vSel, 4)}, {vr(r[i], 4)}, {0 if i == 0 else vr(vD+8*c+4, 4)}")
        A(f"L_kvs{c}:")
        rl.append(f"s_bitcmp1_b32 s{sOpen}, {c}\ns_cbranch_scc0 L_kvn{c}\n" + "\n".join(only([f"v_cmp_eq_u32 vcc, -1, v{q}" for q in r], ["\n".join(kv_load(4*c+i)) for i in range(4)], f"L_kv{c}") if not ntag else sum([kv_load(4*c+i) for i in range(4)], [])) + f"\nL_kvn{c}:")
    A(f"s_bitcmp1_b32 s{sOpen}, 4\ns_cbranch_scc0 L_kvs4\n" + vm.wait("z"))
    for x in tagchk(list(range(vZ, vZ + 4)), f"s{sTagB}", f"s{sFF}", False): A(x)
    A(f"s_cbranch_vccnz L_kvs4\ns_bitset0_b32 s{sOpen}, 4")
    for k in (1, 2, 4, 8):
        for e in range(4): A(f"v_add_f32_dpp v{vZ+e}, v{vZ+e}, v{vZ+e} row_ror:{k} row_mask:0xf bank_mask:0xf")
    A(f"v_cvt_pk_bf16_f32 v{vZ}, v{vZ}, v{vZ+1}\nv_cvt_pk_bf16_f32 v{vZ+1}, v{vZ+2}, v{vZ+3}\nds_write_b64 v4, {vr(vZ, 2)}")
    A(f"L_kvs4:\ns_cmp_lg_u32 s{sOpen}, 0\ns_cbranch_scc1 L_kvrt\nL_kvok:\ns_nop 3")
    rl.append(f"s_bitcmp1_b32 s{sOpen}, 4\ns_cbranch_scc0 L_kvn4\n" + "\n".join(z_load) + "\nL_kvn4:\ns_waitcnt vmcnt(0)\ns_branch L_kvr")
    out_of_line.append("\n".join(rl))
    stamp("L", "k3")
    for (d, s_) in ((0, 1), (2, 3), (0, 2)):
        for h in range(4): A(f"v_pk_add_f32 {vr(vD+8*d+2*h, 2)}, {vr(vD+8*d+2*h, 2)}, {vr(vD+8*s_+2*h, 2)}")
    for e in range(4): A(f"v_cvt_pk_bf16_f32 v{vD+e}, v{vD+2*e}, v{vD+2*e+1}")
    A(f"ds_write_b128 v3, {vr(vD, 4)}")
    A("s_waitcnt lgkmcnt(0)\ns_barrier")
    stamp("L", "E2")
    if e2b: A("s_barrier")
    stamp("L", "E2b")
    for x in touches(17): emit(x)
    moe_loads(17)
    for x in wo_at(17): emit(x)
    stamp("L", "E2i")
    if e2c: A(vm.wait("wo") + "\ns_barrier")
    stamp("L", "E2c")
    A("s_barrier")
    stamp("L", "E3")
    for x in touches(18): emit(x)
    moe_loads(18)
    vCg = 68
    vOne = 64
    A(f"s_cmp_ge_u32 s{sG}, 14\ns_cbranch_scc1 L_noprep0")
    A(f"v_lshrrev_b32 v2, 5, v1\nv_lshlrev_b32 v2, 11, v2\nv_bfe_u32 v3, v1, 3, 2\nv_lshl_add_u32 v2, v3, 7, v2\nv_bfe_u32 v3, v1, 4, 1\nv_bfe_u32 v4, v1, 1, 2\nv_xor_b32 v3, v3, v4")
    A(f"v_lshl_add_u32 v2, v3, 5, v2\nv_and_b32 v3, 1, v1\nv_lshl_add_u32 v2, v3, 4, v2\ns_lshl_b32 s{sT}, s{sWave}, 13\ns_add_u32 s{sT}, s{sT}, {L_MOE}\nv_add_u32 v2, s{sT}, v2\nv_xor_b32 v3, 64, v2")
    A(f"s_mov_b32 s{sC0}, 0x05040100\ns_mov_b32 s{sC1}, 0x07060302")
    A("s_waitcnt vmcnt(0)")
    for mat in range(2):
        for i in range(8): A(f"ds_write_b128 v{2 + (i & 1)}, {ar(mat*32 + i*4, 4)} offset:{mat*32768 + (i >> 2)*4096 + (i & 3)*512}")
    def wd_perm():
        for a in range(2):
            for e in range(8):
                for h in range(2):
                    A(f"v_perm_b32 v{vWDf + a*16 + e*2 + h}, v{vWDr + a*16 + (2*h+1)*4 + (e >> 1)}, v{vWDr + a*16 + 2*h*4 + (e >> 1)}, s{sC1 if e & 1 else sC0}")
    if not wdlate:
        for q in range(32): A(f"v_accvgpr_read_b32 v{vWDr+q}, a{64+q}")
        wd_perm()
    A("s_waitcnt lgkmcnt(0)\nL_noprep0:")
    stamp("L", "E4p")
    A("s_barrier")
    stamp("L", "E4")
    A(f"s_cmp_ge_u32 s{sG}, 14\ns_cbranch_scc1 L_noprep")
    A(f"v_lshrrev_b32 v2, 2, v1\nv_bfe_u32 v3, v1, 3, 2\nv_xor_b32 v3, s{sWave}, v3\nv_lshlrev_b32 v3, 5, v3\nv_lshl_add_u32 v3, v2, 7, v3\nv_and_b32 v2, 3, v1\nv_lshl_add_u32 v3, v2, 3, v3\nv_add_u32 v3, {L_MOE}, v3")
    for ks in range(8):
        for mat in range(2):
            for t in range(2): A(f"ds_read_b64_tr_b16 {ar(mat*32 + ks*4 + 2*t, 2)}, v3 offset:{mat*32768 + ks*4096 + t*2048}")
    for e in range(4): A(f"v_mov_b32 v{vOne+e}, 0x3f803f80")
    A("s_waitcnt lgkmcnt(0)")
    for ks in range(8):
        for mat in range(2):
            A(f"v_mfma_f32_16x16x32_bf16 {vr(vCg+4*mat, 4)}, {ar(mat*32+ks*4, 4)}, {vr(vOne, 4)}, {0 if ks == 0 else vr(vCg+4*mat, 4)}")
    for x in touches(19): emit(x)
    moe_loads(19)
    A("L_noprep:")
    sPxW, sPxR = sK1, sK2
    A(f"v_and_b32 v2, 1, v1\nv_lshlrev_b32 v56, 4, v2\nv_add_u32 v56, {L_PICK}, v56")
    A(f"v_lshrrev_b32 v3, 4, v1\nv_lshlrev_b32 v57, 4, v3\ns_and_b32 s{sT1}, s{sM}, 3\ns_lshl_b32 s{sT}, s{sT1}, 9\ns_add_u32 s{sT}, s{sT}, {WS_CSEG}\nv_add_u32 v57, s{sT}, v57")
    A(f"v_and_b32 v58, 3, v1\nv_lshlrev_b32 v58, 6, v58\nv_lshl_add_u32 v58, v3, 4, v58")
    A(f"s_sub_u32 s{sPxW}, s{sMoe}, s{sT1}\ns_add_u32 s{sPxW}, s{sPxW}, s{sWave}\ns_lshl_b32 s{sPxW}, s{sPxW}, 10\ns_lshl_b32 s{sT1}, s{sT1}, 8\ns_add_u32 s{sPxW}, s{sPxW}, s{sT1}\ns_add_u32 s{sPxW}, s{sPxW}, {WS_PX}")
    A(f"s_lshl_b32 s{sPxR}, s{sMoe}, 10\ns_add_u32 s{sPxR}, s{sPxR}, {WS_PX}")
    A(f"v_bfe_u32 v60, v1, 1, 3\nv_mov_b32 v59, s{sTag}")
    stamp("L", "E5p")
    A("s_barrier")
    stamp("L", "E5")
    vPk = 20
    vX = 24
    A(f"ds_read_b128 {vr(vPk, 4)}, v56")
    A(f"s_mov_b32 s{sMask}, 0x00030003\ns_mov_b32 s{sMask+1}, 0x00030003")
    vH, vYa, vN = 61, 62, 63
    A(f"s_sub_u32 s{sB1}, s{sJ}, 24\ns_lshl_b32 s{sT}, s{sXc}, 3\ns_add_u32 s{sB1}, s{sB1}, s{sT}")
    A(f"s_waitcnt lgkmcnt(0)")
    A(f"s_cmp_ge_u32 s{sG}, 14\ns_cbranch_scc1 L_nomoe")
    A(f"v_lshl_add_u32 v57, v{vPk+3}, 11, v57\ns_mov_b64 exec, s[{sMask}:{sMask+1}]")
    xl = [f"buffer_load_dwordx4 {vr(vX+4*ks, 4)}, v57, {WSR}, 0 offen offset:{64*ks} sc1" for ks in range(8)]
    for x in xl: A(x)
    for e in range(8): A(f"v_mul_f32_e64 v{vCg+e}, v{vCg+e}, -v{vPk+1}")
    A("s_waitcnt vmcnt(0)")
    retry([f"v_max3_u32 v2, v{vX}, v{vX+4}, v{vX+8}", f"v_max3_u32 v3, v{vX+12}, v{vX+16}, v{vX+20}", f"v_max3_u32 v2, v2, v{vX+24}, v{vX+28}",
           f"v_max_u32 v2, v2, v3", f"v_cmp_eq_u32 vcc, -1, v2"], xl, "L_x")
    A("s_mov_b64 exec, -1")
    stamp("L", "xok")
    for ks in range(8):
        for mat in range(2):
            A(f"v_mfma_f32_16x16x32_bf16 {vr(vCg+4*mat, 4)}, {ar(mat*32+ks*4, 4)}, {vr(vX+4*ks, 4)}, {vr(vCg+4*mat, 4)}")
    for e in range(8): A(f"v_bfi_b32 v{vCg+e}, s{sFF}, v59, v{vCg+e}")
    A(f"s_mov_b64 exec, s[{sMask}:{sMask+1}]")
    fast_slow(lambda f: [f"buffer_store_dwordx4 {vr(vCg+4*mat, 4)}, v58, {WSR}, s{sPxW} offen offset:{128*mat}{f}" for mat in range(2)], "L_pxp")
    stamp("L", "pxs")
    A("s_mov_b64 exec, -1")
    pxl = [f"buffer_load_dwordx4 {vr(vX+4*q, 4)}, v58, {WSR}, s{sPxR} offen offset:{256*q} sc1" for q in range(4)]
    for x in pxl: A(x)
    if wdlate: wd_perm()
    A("s_waitcnt vmcnt(0)")
    retry(tagchk(list(range(vX, vX + 16)), f"s{sTagB}", f"s{sFF}", False), pxl, "L_px")
    stamp("L", "pxok")
    g0, t0 = vX, vX + 4
    for h in range(2): A(f"v_pk_add_f32 {vr(g0+2*h, 2)}, {vr(g0+2*h, 2)}, {vr(g0+4+2*h, 2)}\nv_pk_add_f32 {vr(g0+8+2*h, 2)}, {vr(g0+8+2*h, 2)}, {vr(g0+12+2*h, 2)}")
    for h in range(2): A(f"v_pk_add_f32 {vr(g0+2*h, 2)}, {vr(g0+2*h, 2)}, {vr(g0+8+2*h, 2)}")
    for h in range(2): A(f"v_pk_mul_f32 {vr(g0+2*h, 2)}, {vr(g0+2*h, 2)}, {vr(vPk+2, 2)} op_sel_hi:[1,0]")
    for e in range(4): A(f"v_mul_f32 v{t0+e}, {hex(f2u(-LOG2E))}, v{g0+e}")
    for e in range(4): A(f"v_exp_f32 v{t0+e}, v{t0+e}")
    for e in range(4): A(f"v_mul_f32_dpp v{t0+4+e}, v{g0+e}, v{g0+e} quad_perm:[2,3,0,1] row_mask:0xf bank_mask:0xf")
    for e in range(4): A(f"v_add_f32 v{t0+e}, 1.0, v{t0+e}")
    for e in range(4): A(f"v_rcp_f32 v{t0+e}, v{t0+e}")
    for e in range(4): A(f"v_mul_f32 v{g0+e}, v{t0+4+e}, v{t0+e}")
    A(f"v_cvt_pk_bf16_f32 v{t0}, v{g0}, v{g0+1}\nv_cvt_pk_bf16_f32 v{t0+1}, v{g0+2}, v{g0+3}")
    A(f"v_mov_b32_dpp v{g0}, v{t0} quad_perm:[0,1,0,1] row_mask:0xf bank_mask:0xf\nv_mov_b32_dpp v{g0+1}, v{t0+1} quad_perm:[0,1,0,1] row_mask:0xf bank_mask:0xf")
    vB = vX + 8
    for e in range(8):
        A(f"v_cmp_eq_u32 vcc, {e}, v60\nv_cndmask_b32 v{vB+2*e}, 0, v{g0}, vcc\nv_cndmask_b32 v{vB+2*e+1}, 0, v{g0+1}, vcc")
    for q in range(4):
        for a in range(2):
            A(f"v_mfma_f32_16x16x32_bf16 {vr(vCg+4*a, 4)}, {vr(vWDf + a*16 + q*4, 4)}, {vr(vB+4*q, 4)}, {0 if q == 0 else vr(vCg+4*a, 4)}")
    A(f"s_lshl_b32 s{sT}, s{sMoe}, 13\ns_lshl_b32 s{sT1}, s{sWave}, 11\ns_add_u32 s{sT}, s{sT}, s{sT1}\ns_add_u32 s{sT}, s{sT}, {WS_YP}")
    for a in range(2): A(f"v_bfi_b32 v{vCg+4*a}, s{sFF}, v59, v{vCg+4*a}")
    for a in range(2): A(f"buffer_store_dwordx4 {vr(vCg+4*a, 4)}, v{vL16}, {WSR}, s{sT} offen offset:{1024*a}{FL['Y']}")
    A("L_nomoe:")
    stamp("L", "moe")
    A(f"s_cmp_lt_u32 s{sJ}, 24\ns_cbranch_scc1 L_ldone")
    A(f"v_lshrrev_b32 v2, 3, v1\nv_and_b32 v3, 7, v1\nv_lshlrev_b32 v{vYa}, 13, v2\nv_lshl_add_u32 v{vYa}, v3, 4, v{vYa}")
    A(f"s_mul_i32 s{sB0}, s{sWave}, {56*8192}\ns_lshl_b32 s{sT}, s{sB1}, 7\ns_add_u32 s{sB0}, s{sB0}, s{sT}\ns_add_u32 s{sB0}, s{sB0}, {WS_YP}")
    yl = [f"s_add_u32 s{sT}, s{sB0}, {q*65536}\nbuffer_load_dwordx4 {vr(vX+4*q, 4)}, v{vYa}, {WSR}, s{sT} offen{FL['Yld']}" for q in range(7)]
    A(f"s_lshr_b32 s{sT}, s{sB1}, 1\ns_lshl_b32 s{sT}, s{sT}, 5\ns_and_b32 s{sT1}, s{sB1}, 1\ns_lshl_b32 s{sT1}, s{sT1}, 2\ns_add_u32 s{sT}, s{sT}, s{sT1}")
    A(f"v_bfe_u32 v4, v1, 3, 2\nv_lshlrev_b32 v4, 3, v4\nv_bfe_u32 v5, v1, 1, 2\nv_add3_u32 v{vN}, v4, v5, s{sT}\nv_lshlrev_b32 v{vN}, 1, v{vN}")
    A(f"v_lshl_add_u32 v64, v{vPk+3}, 11, v{vN}\ns_mov_b32 s{sT2}, {WS_CSEG}")
    hl = [f"buffer_load_ushort v{vH}, v64, {WSR}, s{sT2} offen sc1"]
    for x in hl + yl: A(x)
    stamp("L", "yi")
    A(f"v_and_b32 v65, 0xfffff800, v{vPk}\nv_not_b32 v4, v65\nv_ashrrev_i32 v4, 31, v4\nv_or_b32 v4, 0x80000000, v4\nv_xor_b32 v65, v65, v4")
    A(f"v_mul_f32 v65, {hex(f2u(-LOG2E))}, v65\nv_exp_f32 v65, v65\nv_add_f32 v65, 1.0, v65\nv_rcp_f32 v65, v65")
    A(f"v_and_b32 v66, 0x7ff, v{vPk}\nv_sub_u32 v66, 2047, v66\nv_lshl_add_u32 v66, v66, 11, v{vN}")
    A(f"v_add_f32 v67, 1.0, v{vPk+2}\nv_mul_f32_e64 v{vPk+1}, -v{vPk+1}, v{vPk+2}")
    A(f"s_lshl_b32 s{sT1}, s{sWave}, 7\ns_add_u32 s{sT1}, s{sT1}, {L_FIN}\nv_lshlrev_b32 v6, 4, v3\nv_add_u32 v6, s{sT1}, v6")
    A(f"v_bfe_u32 v4, v1, 3, 2\nv_lshlrev_b32 v7, 4, v3\nv_lshl_add_u32 v7, v4, 2, v7\nv_add_u32 v7, {L_FIN}, v7")
    A("s_waitcnt vmcnt(0)")
    retry([f"v_add_u32 v8, 1, v{vH}", "v_lshrrev_b32 v8, 16, v8", f"v_xor_b32 v8, s{sTagB}, v8"] + tagchk([vX + 4*q for q in range(7)] + [8], f"s{sTagB}", f"s{sFF}", False),
          only([f"v_cmp_ne_u32 vcc, 0, v8"] + [f"v_and_b32 v2, s{sFF}, v{vX+4*q}\nv_cmp_ne_u32 vcc, 0, v2" for q in range(7)], hl + yl, "L_y", ["s_nop 0"] + [f"v_xor_b32 v{vX+4*q}, s{sTagB}, v{vX+4*q}" for q in range(7)]), "L_y")
    stamp("L", "yok")
    for (d, s_) in ((0, 1), (2, 3), (4, 5), (0, 2), (4, 6), (0, 4)):
        for h in range(2): A(f"v_pk_add_f32 {vr(vX+4*d+2*h, 2)}, {vr(vX+4*d+2*h, 2)}, {vr(vX+4*s_+2*h, 2)}")
    for e in range(4): A(f"v_add_f32_dpp v{vX+e}, v{vX+e}, v{vX+e} row_ror:8 row_mask:0xf bank_mask:0xf")
    for sw in ("16", "32"):
        for e in range(4): A(f"v_mov_b32 v{vX+4+e}, v{vX+e}")
        for e in range(4): A(f"v_permlane{sw}_swap_b32 v{vX+e}, v{vX+4+e}")
        for e in range(4): A(f"v_add_f32 v{vX+e}, v{vX+e}, v{vX+4+e}")
    A(f"ds_write_b128 v6, {vr(vX, 4)}\ns_waitcnt lgkmcnt(0)\ns_barrier")
    stamp("L", "E7")
    A(f"s_cmp_lg_u32 s{sWave}, 0\ns_cbranch_scc1 L_ldone")
    for w in range(4): A(f"ds_read_b32 v{vX+w}, v7 offset:{128*w}")
    A(f"v_lshlrev_b32 v{vH}, 16, v{vH}\nv_fma_f32 v{vH}, v{vH}, v67, v{vPk+1}")
    A(f"s_waitcnt lgkmcnt(0)\nv_add_f32 v{vX}, v{vX}, v{vX+1}\nv_add_f32 v{vX+2}, v{vX+2}, v{vX+3}\nv_add_f32 v{vX}, v{vX}, v{vX+2}")
    A(f"v_fmac_f32 v{vH}, v{vX}, v65\nv_cvt_pk_bf16_f32 v{vH}, v{vH}, v{vH}\ns_mov_b64 exec, 0xffffffff")
    A(f"buffer_store_short v{vH}, v66, s[{SOUT}:{SOUT+3}], 0 offen sc1")
    A("L_ldone:")
    stamp("L", "end")
    dump_stamps("L")
    A("s_endpgm")

    A("L_compute:")
    vm = VM()
    vL16 = 16
    vAr, vBr = 8, 12
    ACC = 32
    FA, FB, aOne = 0, 32, 80
    WIN = 65536
    def T(rb, c): return ACC + (rb*6 + c)*4
    A(f"v_and_b32 v2, 15, v1\nv_lshrrev_b32 v4, 4, v1\nv_lshrrev_b32 v3, 1, v2\nv_xor_b32 v3, v3, v4\nv_lshlrev_b32 v2, 7, v2")
    A(f"s_lshl_b32 s{sT}, s{sWm}, 13\nv_add_u32 v2, s{sT}, v2")
    for s in range(2):
        A(f"v_xor_b32 v5, {4*s}, v3\nv_lshl_add_u32 v{vAr+s}, v5, 4, v2\nv_add_u32 v{vAr+2+s}, {WIN}, v{vAr+s}")
    A(f"v_lshrrev_b32 v2, 5, v1\nv_mul_u32_u24 v2, 6144, v2\nv_bfe_u32 v3, v1, 4, 1\nv_lshl_add_u32 v2, v3, 10, v2")
    A(f"v_bfe_u32 v4, v1, 2, 2\nv_lshl_add_u32 v2, v4, 7, v2\nv_lshlrev_b32 v3, 1, v3\nv_bfe_u32 v4, v1, 3, 1\nv_or_b32 v3, v3, v4")
    A(f"s_lshl_b32 s{sT}, s{sWh}, 1\nv_xor_b32 v3, s{sT}, v3\nv_and_b32 v4, 3, v1\nv_lshl_add_u32 v2, v4, 3, v2")
    for cb in range(2):
        A(f"v_xor_b32 v4, {cb}, v3\nv_lshl_add_u32 v{vBr+cb}, v4, 5, v2\nv_add_u32 v{vBr+2+cb}, {WIN}, v{vBr+cb}")
    A("s_waitcnt lgkmcnt(0)")
    srd(A, SWS, 58, 59, 256 << 20)
    srd(A, SWR, 48, 49, 2048)
    srd(A, SOUT, 56, 57, 2048*1024*2)
    if stamps in ("t1", "f1"):
        for r in SREG: A(f"s_mov_b32 s{r}, 0")
    stamp("C", "start")
    A(f"s_lshl_b32 s{sB0}, s{sG}, 4\ns_add_u32 s{sB0}, s{sB0}, s{sM}\ns_mul_i32 s{sB0}, s{sB0}, {KVS}\ns_add_u32 s{sB0}, s{sB0}, {WS_KV}")
    A(f"s_lshl_b32 s{sB1}, s{sM}, 18\ns_lshl_b32 s{sT}, s{sWm}, 17\ns_add_u32 s{sB1}, s{sB1}, s{sT}\ns_lshl_b32 s{sT}, s{sG}, 11\ns_add_u32 s{sB1}, s{sB1}, s{sT}\ns_lshl_b32 s{sT}, s{sWh}, 10\ns_add_u32 s{sB1}, s{sB1}, s{sT}\ns_add_u32 s{sB1}, s{sB1}, {WS_O}")
    A(f"v_mov_b32 v2, 0\nbuffer_load_dword v19, v2, {WSR}, 0 offen sc1")
    A(f"buffer_load_dwordx4 v[24:27], v{vL16}, s[{SWR}:{SWR+3}], 0 offen\nbuffer_load_dwordx4 v[28:31], v{vL16}, s[{SWR}:{SWR+3}], 0 offen offset:1024")
    A(f"v_lshrrev_b32 v3, 4, v1\nv_lshlrev_b32 v3, 3, v3\ns_lshl_b32 s{sT}, s{sM}, 7")
    for c in range(4): A(f"buffer_load_dwordx2 {ar(96+2*c, 2)}, v3, s[{SWR}:{SWR+3}], s{sT} offen offset:{32*c}")
    for i in range(96): A(f"v_mov_b32 v{ACC+i}, 0")
    A(f"s_mov_b32 s{sT}, 0x3f803f80")
    for e in range(4): A(f"v_accvgpr_write_b32 a{aOne+e}, s{sT}")
    A(f"s_mov_b32 s{sEps}, {hex(f2u(1e-6))}\ns_mov_b32 s{sEps+1}, {hex(f2u(1e-6))}\ns_mov_b32 s{sOne}, {hex(f2u(1.000001))}\ns_mov_b32 s{sOne+1}, {hex(f2u(1.000001))}")
    A(f"s_mov_b32 s{sLog}, {hex(f2u(LOG2E))}\ns_mov_b32 s{sLog+1}, {hex(f2u(LOG2E))}")
    A("s_waitcnt vmcnt(4)")
    A(f"v_readfirstlane_b32 s{sTag}, v19")
    for q in range(8): A(f"v_lshlrev_b32 v{128+2*q}, 16, v{24+q}\nv_and_b32 v{129+2*q}, 0xffff0000, v{24+q}")
    A(f"s_add_u32 s{sTag}, s{sTag}, 1")
    for q in range(4): A(f"v_pk_add_f32 {vr(128+4*q, 2)}, {vr(128+4*q, 2)}, {vr(130+4*q, 2)}")
    A(f"v_pk_add_f32 v[128:129], v[128:129], v[132:133]\nv_pk_add_f32 v[136:137], v[136:137], v[140:141]\nv_pk_add_f32 v[128:129], v[128:129], v[136:137]\nv_add_f32 v2, v128, v129")
    for k in (1, 2, 4, 8): A(f"v_add_f32_dpp v2, v2, v2 row_ror:{k} row_mask:0xf bank_mask:0xf")
    for sw in ("16", "32"): A(f"v_mov_b32 v3, v2\nv_permlane{sw}_swap_b32 v2, v3\nv_add_f32 v2, v2, v3")
    A(f"v_readfirstlane_b32 s{sWsum}, v2")
    cLsb, cSel, cFF, cM = sM0A, sM0B, sK1, 7
    A(f"v_and_b32 v{cM}, 3, v1\nv_lshrrev_b32_e64 v{cM}, v{cM}, s{sTag}\nv_and_b32 v{cM}, 1, v{cM}\nv_mul_u32_u24 v{cM}, 0x10001, v{cM}")
    A(f"s_mov_b32 s{cLsb}, 0x10001\ns_mov_b32 s{cSel}, 0x07060302\ns_movk_i32 s{cFF}, 0xff")
    cl_ops = [f"s_add_u32 s{sT}, s{sB1}, {rb*32768}\nbuffer_store_dwordx4 v[28:31], v{vL16}, {WSR}, s{sT} offen sc1" for rb in range(4)]
    cl_ops.append(f"s_lshl_b32 s{sT}, s{sWave}, 10\ns_add_u32 s{sT}, s{sT}, s{sB0}\nbuffer_store_dwordx4 v[28:31], v{vL16}, {WSR}, s{sT} offen sc1")
    if cclr:
        for e in range(4): A(f"v_mov_b32 v{28+e}, -1")
        assert max(cclr) < id_it - 2
        for k, x in zip(cclr, cl_ops):
            if k < 0: A(x)
    def reads(st, s, buf):
        wa, oa = divmod(LA[st % 4], WIN); wb, ob = divmod(LB[st % 3], WIN)
        La = [f"ds_read_b128 {ar(FA + (buf*4+rb)*4, 4)}, v{vAr+2*wa+s} offset:{oa + rb*2048}" for rb in range(4)]
        Lb = [f"ds_read_b64_tr_b16 {ar(FB + (buf*6+p*2+cb)*4 + 2*t, 2)}, v{vBr+2*wb+cb} offset:{ob + s*12288 + p*2048 + t*512}" for p in range(3) for cb in range(2) for t in range(2)]
        return [La[0], Lb[0], Lb[1], La[1], La[2], La[3]] + Lb[2:]
    def mfmas(buf, order=(0, 1, 2, 3, 4, 5)):
        L = []
        for c in order:
            for rb in range(4):
                a = ar(FA + (buf*4+rb)*4, 4); b = ar(FB + (buf*6+c)*4, 4); acc = vr(T(rb, c), 4)
                L.append(f"v_mfma_f32_16x16x32_bf16 {acc}, {b}, {a}, {acc}" if c < 2 else f"v_mfma_f32_16x16x32_bf16 {acc}, {a}, {b}, {acc}")
        return L
    CSA = 128
    def cs_publish():
        L = []
        L.append(f"s_cmp_lg_u32 s{sWm}, 0\ns_cbranch_scc1 L_nocsp")
        L.append(f"v_and_b32 v2, 16, v1\nv_cmp_ne_u32 vcc, 0, v2")
        for p in range(3): L.append(f"v_cndmask_b32 v{24+p}, v{CSA+8*p}, v{CSA+8*p+4}, vcc")
        L.append(f"v_mov_b32 v27, s{sTag}\ns_lshl_b32 s{sT}, s{sG}, 4\ns_add_u32 s{sT}, s{sT}, s{sM}\ns_lshl_b32 s{sT}, s{sT}, 10\ns_lshl_b32 s{sT1}, s{sWh}, 9\ns_add_u32 s{sT}, s{sT}, s{sT1}\ns_add_u32 s{sT}, s{sT}, {WS_CS}")
        L.append(f"s_mov_b64 exec, 0xffffffff\nbuffer_store_dwordx4 v[24:27], v{vL16}, {WSR}, s{sT} offen sc1\ns_mov_b64 exec, -1\nL_nocsp:")
        return ["\n".join(L)]
    NMr = [20, 128, 136, 144]; RSr = [24, 132, 140, 148]
    vS1, vS2 = 17, 18
    CSk = [6, 8, 10, 18]
    stat_addr = [f"v_lshrrev_b32 v2, 4, v1\nv_lshlrev_b32 v2, 4, v2\ns_lshl_b32 s{sT}, s{sWm}, 8\ns_add_u32 s{sT}, s{sT}, {L_NM}\nv_add_u32 v{vS1}, s{sT}, v2",
                 f"v_and_b32 v2, 15, v1\nv_lshlrev_b32 v2, 2, v2\ns_lshl_b32 s{sT}, s{sWh}, 7\ns_add_u32 s{sT}, s{sT}, {L_CSUM}\nv_add_u32 v{vS2}, s{sT}, v2"]
    stat_reads = []
    for rb in range(4):
        stat_reads.append(f"ds_read_b128 {vr(NMr[rb], 4)}, v{vS1} offset:{rb*64}")
        stat_reads.append(f"ds_read_b128 {vr(RSr[rb], 4)}, v{vS1} offset:{512 + rb*64}")
        if rb == 0:
            for i in range(4): stat_reads.append(f"ds_read_b32 v{CSk[i]}, v{vS2} offset:{256*(1 + i//2) + 64*(i&1)}")
            stat_reads.append(f"v_mov_b32 v19, {L_FAST}\nds_read_b32 v19, v19")
    A("s_barrier")
    for x in reads(0, 0, 0): A(x)
    for st in range(16):
        last = st == 15
        for s in range(2):
            buf = s
            lasts = s == 1
            if lasts and last: r = stat_reads
            else: r = reads(st + 1, 0, buf ^ 1) if lasts else reads(st, 1, buf ^ 1)
            extra = []
            if st == 3 and s == 0: extra = extra + cs_publish()
            if st == 14 and s == 0: extra = stat_addr
            if s == 0: extra = extra + [x for k, x in zip(cclr, cl_ops) if k == st]
            if cclr and s == 0 and st == id_it - 1: extra = extra + ["s_waitcnt vmcnt(0)"]
            A("s_waitcnt lgkmcnt(0)")
            if s == 0: stamp("C", str(st))
            if st == 0:
                A(f"s_cmp_lg_u32 s{sWm}, 0\ns_cbranch_scc1 L_nocs{s}")
                for c in range(6):
                    A(f"v_mfma_f32_16x16x32_bf16 {vr(CSA+4*c, 4)}, {ar(aOne, 4)}, {ar(FB + (buf*6+c)*4, 4)}, {0 if s == 0 else vr(CSA+4*c, 4)}")
                A(f"L_nocs{s}:")
            ri = 0; ei = 0
            for i, mm in enumerate(mfmas(buf, (2, 3, 4, 5, 0, 1) if (lasts and last) else (0, 1, 2, 3, 4, 5))):
                A(mm)
                if lasts and i == 0:
                    stamp("C", f"b{st}")
                    A("s_barrier")
                    stamp("C", f"a{st}")
                if ri < len(r):
                    A(r[ri]); ri += 1
                elif ei < len(extra) and i % 2 == 0:
                    A(extra[ei]); ei += 1
            assert ri == len(r) and ei == len(extra)
    stamp("C", "loop")
    def bc(reg):
        assert reg % 2 == 0
        return vr(reg, 2), 0
    def lnfold(t, nm, cs, kind):
        L = []
        for h in range(2):
            if kind == "row":
                p, o = bc(cs); L.append(f"v_pk_fma_f32 {vr(t+2*h, 2)}, {vr(nm+2*h, 2)}, {p}, {vr(t+2*h, 2)} op_sel:[0,{o},0] op_sel_hi:[1,{o},1]")
            else:
                p, o = bc(nm); L.append(f"v_pk_fma_f32 {vr(t+2*h, 2)}, {vr(cs+2*h, 2)}, {p}, {vr(t+2*h, 2)} op_sel:[0,{o},0] op_sel_hi:[1,{o},1]")
        return L
    def phi(t, rs, rl, kind, dst, tmp):
        L = []
        for h in range(2):
            if kind == "row":
                L.append(f"v_pk_mul_f32 {vr(tmp+2*h, 2)}, {vr(t+2*h, 2)}, {vr(rl+2*h, 2)}")
            else:
                p, o = bc(rl); L.append(f"v_pk_mul_f32 {vr(tmp+2*h, 2)}, {vr(t+2*h, 2)}, {p} op_sel:[0,{o}] op_sel_hi:[1,{o}]")
        for h in range(2):
            if kind == "row":
                L.append(f"v_pk_fma_f32 {vr(t+2*h, 2)}, {vr(t+2*h, 2)}, {vr(rs+2*h, 2)}, s[{sOne}:{sOne+1}]")
            else:
                p, o = bc(rs); L.append(f"v_pk_fma_f32 {vr(t+2*h, 2)}, {vr(t+2*h, 2)}, {p}, s[{sOne}:{sOne+1}] op_sel:[0,{o},0] op_sel_hi:[1,{o},1]")
        for e in range(4): L.append(f"v_exp_f32_e64 v{tmp+e}, v{tmp+e} clamp")
        for h in range(2): L.append(f"v_pk_add_f32 {vr(tmp+2*h, 2)}, {vr(tmp+2*h, 2)}, s[{sEps}:{sEps+1}]")
        for e in range(4): L.append(f"v_max_f32 v{t+e}, v{t+e}, v{tmp+e}")
        for h in range(2): L.append(f"v_cvt_pk_bf16_f32 v{dst+h}, v{t+2*h}, v{t+2*h+1}")
        return L
    def zip2(a, b):
        o = []
        for i in range(max(len(a), len(b))):
            if i < len(a): o.append(a[i])
            if i < len(b): o.append(b[i])
        return o
    KVa = lambda dt, et: T(1, 2 + dt*2 + et)
    Za = lambda dt: 20 + 4*dt
    A("s_waitcnt lgkmcnt(0)")
    A(f"v_readfirstlane_b32 s{sFast}, v19")
    for rb in range(4):
        P = rb >> 1; o = 2*(rb & 1)
        for h in range(2): A(f"v_pk_mul_f32 {vr(28+2*h, 2)}, {vr(RSr[rb]+2*h, 2)}, s[{sLog}:{sLog+1}]")
        k0 = lnfold(T(rb, 2), NMr[rb], CSk[0], "row") + phi(T(rb, 2), RSr[rb], 28, "row", T(2*P, 2) + o, 2)
        k1 = lnfold(T(rb, 3), NMr[rb], CSk[1], "row") + phi(T(rb, 3), RSr[rb], 28, "row", T(2*P, 3) + o, 12)
        for x in zip2(k0, k1): A(x)
        vv = []
        for cb in range(2):
            t = T(rb, 4+cb)
            L = lnfold(t, NMr[rb], CSk[2+cb], "row")
            for h in range(2): L.append(f"v_pk_mul_f32 {vr(t+2*h, 2)}, {vr(t+2*h, 2)}, {vr(RSr[rb]+2*h, 2)}")
            for h in range(2): L.append(f"v_cvt_pk_bf16_f32 v{T(2*P, 4+cb)+o+h}, v{t+2*h}, v{t+2*h+1}")
            vv.append(L)
        for x in zip2(vv[0], vv[1]): A(x)
        if rb & 1:
            for dt in range(2):
                for et in range(2):
                    A(f"v_mfma_f32_16x16x32_bf16 {vr(KVa(dt, et), 4)}, {vr(T(2*P, 2+dt), 4)}, {vr(T(2*P, 4+et), 4)}, {0 if P == 0 else vr(KVa(dt, et), 4)}")
                A(f"v_mfma_f32_16x16x32_bf16 {vr(Za(dt), 4)}, {vr(T(2*P, 2+dt), 4)}, {ar(aOne, 4)}, {0 if P == 0 else vr(Za(dt), 4)}")
    A(f"s_lshl_b32 s{sT}, s{sWave}, 11\ns_add_u32 s{sT}, s{sT}, {L_EX}\nv_add_u32 v2, s{sT}, v{vL16}\nv_xor_b32 v3, 4096, v2")
    A(f"v_lshrrev_b32 v4, 4, v1\nv_lshlrev_b32 v5, 4, v4\nv_lshlrev_b32 v4, 5, v4\ns_lshl_b32 s{sT}, s{sWave}, 6\ns_add_u32 s{sT}, s{sT}, {L_ZEX}\nv_add_u32 v5, s{sT}, v5\nv_xor_b32 v6, 128, v5")
    A(f"s_lshl_b32 s{sT2}, s{sWh}, 1\ns_add_u32 s{sT2}, s{sT2}, s{sWm}\ns_lshl_b32 s{sT2}, s{sT2}, 10\ns_add_u32 s{sT2}, s{sT2}, s{sB0}")
    A(f"s_lshl_b32 s{sT3}, s{sWh}, 7\ns_lshl_b32 s{sT}, s{sWm}, 4\ns_add_u32 s{sT3}, s{sT3}, s{sT}\ns_add_u32 s{sT3}, s{sT3}, s{sB0}\ns_add_u32 s{sT3}, s{sT3}, 4096")
    A(f"s_mov_b32 s{sMask}, 0x00010001\ns_mov_b32 s{sMask+1}, 0x00010001")
    A(f"v_mov_b32 v15, s{sTag}")
    stamp("C", "ex")
    A(f"s_cmp_eq_u32 s{sWm}, 0\ns_cbranch_scc0 L_ex1")
    R = 128
    def exch(wm):
        L = [f"ds_write_b128 v2, {vr(KVa(0, 1-wm), 4)}", f"ds_write_b128 v2, {vr(KVa(1, 1-wm), 4)} offset:1024", f"ds_write_b128 v5, {vr(Za(1-wm), 4)}",
             "s_waitcnt lgkmcnt(0)", "s_barrier",
             f"ds_read_b128 {vr(R, 4)}, v3", f"ds_read_b128 {vr(R+4, 4)}, v3 offset:1024", f"ds_read_b128 {vr(R+8, 4)}, v6",
             "s_waitcnt lgkmcnt(1)"]
        for dt in range(2):
            for h in range(2): L.append(f"v_pk_add_f32 {vr(R+4*dt+2*h, 2)}, {vr(R+4*dt+2*h, 2)}, {vr(KVa(dt, wm)+2*h, 2)}")
        L.append("s_waitcnt lgkmcnt(0)")
        for h in range(2): L.append(f"v_pk_add_f32 {vr(R+8+2*h, 2)}, {vr(R+8+2*h, 2)}, {vr(Za(wm)+2*h, 2)}")
        return L
    for x in exch(0): A(x)
    A("s_branch L_ex_d\nL_ex1:")
    for x in exch(1): A(x)
    A("L_ex_d:")
    stamp("C", "E1")
    for e in range(4): A(f"v_perm_b32 v{R+12+e}, v{R+2*e+1}, v{R+2*e}, s{cSel}" if e < ntag else f"v_cvt_pk_bf16_f32 v{R+12+e}, v{R+2*e}, v{R+2*e+1}")
    for e in range(ntag): A(f"v_bfi_b32 v{R+12+e}, s{cLsb}, v{cM}, v{R+12+e}")
    for e in range(4): A(f"v_bfi_b32 v{R+8+e}, s{cFF}, v15, v{R+8+e}")
    fast_slow(lambda f: [f"buffer_store_dwordx4 {vr(R+12, 4)}, v{vL16}, {WSR}, s{sT2} offen{f}", f"s_mov_b64 exec, s[{sMask}:{sMask+1}]",
                         f"buffer_store_dwordx4 {vr(R+8, 4)}, v4, {WSR}, s{sT3} offen{f}", "s_mov_b64 exec, -1"], "L_kvp")
    stamp("C", "kv")
    NMq, RSq, RLq, CSq = [8, 10, 12, 14], [128, 130, 132, 134], [20, 22, 4, 6], 144
    A(f"v_and_b32 v2, 15, v1\nv_lshlrev_b32 v2, 2, v2\ns_lshl_b32 s{sT}, s{sWm}, 8\ns_add_u32 s{sT}, s{sT}, {L_NM}\nv_add_u32 v2, s{sT}, v2")
    A(f"v_lshrrev_b32 v3, 4, v1\nv_lshlrev_b32 v3, 4, v3\ns_lshl_b32 s{sT}, s{sWh}, 7\ns_add_u32 s{sT}, s{sT}, {L_CSUM}\nv_add_u32 v5, s{sT}, v3")
    for rb in range(4): A(f"ds_read_b32 v{NMq[rb]}, v2 offset:{64*rb}\nds_read_b32 v{RSq[rb]}, v2 offset:{512 + 64*rb}")
    for c in range(2): A(f"ds_read_b128 {vr(CSq+4*c, 4)}, v5 offset:{64*c}")
    A(f"s_lshl_b32 s{sT}, s{sWh}, 11\ns_add_u32 s{sT}, s{sT}, {L_KVF}\nv_add_u32 v17, s{sT}, v{vL16}\ns_lshl_b32 s{sT}, s{sWh}, 6\ns_add_u32 s{sT}, s{sT}, {L_ZF}\nv_add_u32 v18, s{sT}, v3")
    A("s_waitcnt lgkmcnt(0)")
    for rb in range(4): A(f"v_mul_f32 v{RLq[rb]}, s{sLog}, v{RSq[rb]}")
    for rb in range(4):
        q0 = lnfold(T(rb, 0), NMq[rb], CSq, "col") + phi(T(rb, 0), RSq[rb], RLq[rb], "col", T(rb, 0), 24)
        q1 = lnfold(T(rb, 1), NMq[rb], CSq+4, "col") + phi(T(rb, 1), RSq[rb], RLq[rb], "col", T(rb, 0) + 2, 28)
        for x in zip2(q0[:-2], q1[:-2]) + q0[-2:] + q1[-2:]: A(x)
    vWb, vWc, vXa, vO1, vO2 = 8, 12, 20, 6, 19
    A(f"v_lshrrev_b32 v2, 4, v1\nv_bfe_u32 v3, v1, 2, 2\nv_lshl_add_u32 v4, v2, 2, v3\nv_lshlrev_b32 v5, 7, v4\nv_bfe_u32 v4, v4, 1, 2\nv_lshl_add_u32 v5, v4, 5, v5")
    A(f"v_and_b32 v4, 3, v1\nv_lshl_add_u32 v5, v4, 3, v5\nv_add_u32 v{vWb}, {L_WO}, v5")
    for c in range(1, 4): A(f"v_xor_b32 v{vWb+c}, {32*c}, v{vWb}")
    for c in range(4): A(f"v_add_u32 v{vWc+c}, {WIN}, v{vWb+c}")
    A(f"v_and_b32 v3, 15, v1\nv_lshrrev_b32 v4, 1, v3\nv_lshrrev_b32 v5, 1, v2\nv_xor_b32 v4, v4, v5\nv_lshlrev_b32 v4, 4, v4\nv_lshl_add_u32 v4, v3, 7, v4\nv_and_b32 v5, 1, v2\nv_lshl_add_u32 v4, v5, 3, v4")
    A(f"s_lshl_b32 s{sT}, s{sWave}, 12\nv_add_u32 v{vXa}, s{sT}, v4")
    for c in range(1, 4): A(f"v_xor_b32 v{vXa+c}, {32*c}, v{vXa}")
    A(f"s_lshl_b32 s{sKA}, s{sG}, 18\ns_lshl_b32 s{sT}, s{sWave}, 16\ns_add_u32 s{sKA}, s{sKA}, s{sT}\ns_add_u32 s{sKA}, s{sKA}, {WS_O}")
    A(f"v_add_u32 v{vO1}, s{sKA}, v{vL16}\nv_add_u32 v{vO2}, 32768, v{vO1}\ns_lshl_b32 s{sKA}, s{sRho}, 11")
    stamp("C", "q")
    A("s_barrier")
    stamp("C", "E2")
    A(f"ds_read_b128 a[0:3], v17\nds_read_b128 a[4:7], v17 offset:1024\nds_read_b128 a[8:11], v18\ns_waitcnt lgkmcnt(0)")
    for rb in range(4):
        A(f"v_mfma_f32_16x16x32_bf16 {vr(T(rb, 4), 4)}, a[8:11], {vr(T(rb, 0), 4)}, 0")
        A(f"v_mfma_f32_16x16x32_bf16 {vr(T(rb, 2), 4)}, a[0:3], {vr(T(rb, 0), 4)}, 0")
        A(f"v_mfma_f32_16x16x32_bf16 {vr(T(rb, 3), 4)}, a[4:7], {vr(T(rb, 0), 4)}, 0")
    for rb in range(4):
        d = T(rb, 4)
        A(f"v_add_f32 v{d}, s{sEps}, v{d}\nv_rcp_f32 v{d}, v{d}")
        for et in range(2):
            for h in range(2): A(f"v_pk_mul_f32 {vr(T(rb, 2+et)+2*h, 2)}, {vr(T(rb, 2+et)+2*h, 2)}, {vr(d, 2)} op_sel_hi:[1,0]")
        for et in range(2):
            for h in range(2): A(f"v_perm_b32 v{T(rb, 5)+2*et+h}, v{T(rb, 2+et)+2*h+1}, v{T(rb, 2+et)+2*h}, s{cSel}" if 2*et + h < otag else
                                 f"v_cvt_pk_bf16_f32 v{T(rb, 5)+2*et+h}, v{T(rb, 2+et)+2*h}, v{T(rb, 2+et)+2*h+1}")
        for e in range(otag): A(f"v_bfi_b32 v{T(rb, 5)+e}, s{cLsb}, v{cM}, v{T(rb, 5)+e}")
        A(f"s_add_u32 s{sT}, s{sB1}, {rb*32768}\nbuffer_store_dwordx4 {vr(T(rb, 5), 4)}, v{vL16}, {WSR}, s{sT} offen{FL['O']}")
    stamp("C", "O")
    vm = VM()
    AC2, OB = 24, 56
    ND = odepth
    def OBr(i, hh, rb): return OB + (i % ND)*16 + (hh*2 + rb)*4
    def o_loads(i, again=False):
        so = sT if again else sKA
        L = [f"s_add_u32 s{sT}, s{sRho}, {i}\ns_and_b32 s{sT}, s{sT}, 15\ns_lshl_b32 s{sT}, s{sT}, 11"] if again else []
        for hh in range(2):
            for rb in range(2):
                L.append(f"buffer_load_dwordx4 {vr(OBr(i, hh, rb), 4)}, v{vO2 if rb else vO1}, {WSR}, s{so} offen offset:{1024*hh}{FL['Old']}")
        if not again and i < 15: L.append(f"s_add_u32 s{sKA}, s{sKA}, 2048\ns_and_b32 s{sKA}, s{sKA}, 0x7fff")
        return L
    def o_chk(i): return tagchk([OBr(i, 0, 0) + 4*q + e for q in range(4) for e in range(otag)], f"v{cM}", f"s{cLsb}", True) if otag else sentchk([OBr(i, 0, 0) + 4*q for q in range(4)])
    def wo_reads(h):
        i, hh = h >> 1, h & 1
        return [f"ds_read_b64_tr_b16 {ar((h % 3)*16 + c*4 + 2*t, 2)}, v{(vWc if i >= 8 else vWb)+c} offset:{(i & 7)*8192 + hh*4096 + t*2048}" for c in range(4) for t in range(2)]
    if e2b: A("s_barrier")
    A(f"v_xor_b32 v{cM}, s{cLsb}, v{cM}")
    for rb in range(2):
        for c in range(4): A(f"ds_read_b64 {vr(AC2 + (rb*4+c)*4 + 2, 2)}, v{vXa+c} offset:{rb*2048}")
    A("s_waitcnt lgkmcnt(0)")
    for x in wo_reads(0) + wo_reads(1): A(x)
    for t in range(8):
        b = AC2 + 4*t
        A(f"v_lshlrev_b32 v{b}, 16, v{b+2}\nv_and_b32 v{b+1}, 0xffff0000, v{b+2}\nv_lshlrev_b32 v{b+2}, 16, v{b+3}\nv_and_b32 v{b+3}, 0xffff0000, v{b+3}")
    W = 120 if e3late else 56
    assert not e3late or ND <= 4
    def w_unpack():
        for q in range(8): A(f"v_accvgpr_read_b32 v{136+q}, a{96+q}")
        for q in range(8): A(f"v_lshlrev_b32 v{W+2*q}, 16, v{136+q}\nv_and_b32 v{W+2*q+1}, 0xffff0000, v{136+q}")
    vSa, vSl, vRk, vS2a = 144, 145, 146, 147
    def st_addr():
        A(f"v_and_b32 v2, 15, v1\nv_lshrrev_b32 v3, 5, v1\nv_lshlrev_b32 v4, 4, v2\nv_lshl_add_u32 v{vSa}, v3, 8, v4")
        A(f"s_lshl_b32 s{sKB}, s{sG}, 15\ns_lshl_b32 s{sT}, s{sWave}, 9\ns_add_u32 s{sKB}, s{sKB}, s{sT}\ns_add_u32 s{sKB}, s{sKB}, {WS_ST}\ns_lshl_b32 s{sT}, s{sM}, 11\ns_add_u32 s{sT2}, s{sKB}, s{sT}")
        A(f"s_mov_b32 s{sMask}, 0xffff\ns_mov_b32 s{sMask+1}, 0xffff")
        A(f"v_and_b32 v2, 31, v1\nv_lshlrev_b32 v5, 4, v2\nv_lshl_add_u32 v{vSl}, v3, 11, v5")
        A(f"s_lshl_b32 s{sT}, s{sG}, 7\ns_lshl_b32 s{sT1}, s{sWave}, 5\ns_add_u32 s{sT}, s{sT}, s{sT1}\ns_sub_u32 s{sT}, 2047, s{sT}\nv_sub_u32 v{vRk}, s{sT}, v2")
        A(f"s_lshl_b32 s{sT}, s{sWave}, 9\ns_add_u32 s{sT}, s{sT}, {L_ST2}\nv_add_u32 v{vS2a}, s{sT}, v5")
    if e3late: w_unpack(); st_addr()
    if owait: A("s_waitcnt vmcnt(0)")
    stamp("C", "Oi")
    nxt = 0
    def next_o():
        nonlocal nxt
        L = [(y, int(y.startswith("buffer")), f"o{nxt}") for x in o_loads(nxt) for y in x.split("\n")]
        nxt += 1
        return L
    def again(j, n): return sum([o_loads(q, True) for q in range(j, min(nxt, j + n))], [])
    def emitc(it):
        x, n, tag = it
        A(x() if callable(x) else x)
        if n: vm.issue(tag, n)
    for i in range(o0):
        for x in next_o(): emitc(x)
    A(vm.wait("o0"))
    retry(o_chk(0), again(0, o0), "L_o0")
    stamp("C", "Ook")
    assert e2c != 1
    for i in range(16):
        F = []
        for _ in range(2):
            if nxt < min(16, i + ND): F += next_o()
        ck = o_chk(i + 1) if i < 15 else []
        if ck: F += [(lambda i=i: vm.wait(f"o{i+1}"), 0, None)] + [(x, 0, None) for x in ck]
        for hh in range(2):
            h = 2*i + hh
            mm = [f"v_mfma_f32_16x16x32_bf16 {vr(AC2 + (rb*4+c)*4, 4)}, {ar((h % 3)*16 + c*4, 4)}, {vr(OBr(i, hh, rb), 4)}, {vr(AC2 + (rb*4+c)*4, 4)}" for c in range(4) for rb in range(2)]
            A(f"s_waitcnt lgkmcnt({8 if h < 31 else 0})")
            if hh == 0: stamp("C", f"g{i}")
            fill = wo_reads(h + 2) if h < 30 else []
            for k in range(8):
                A(mm[k])
                if k == 0 and hh == 0 and e2c == i + 1: A("s_barrier")
                if k < len(fill): A(fill[k])
                q = 8*hh + k
                for x in F[(len(F)*q + 15)//16:(len(F)*(q + 1) + 15)//16]: emitc(x)
        if i < 15: retry2(ck, again(i + 1, orl), f"L_o{i+1}")
    if not e3late: A("s_barrier")
    stamp("C", "E3")
    S = 72
    if not e3late: w_unpack(); st_addr()
    for rb in range(2):
        b = AC2 + rb*16; s_ = S + rb*8
        A(f"v_pk_add_f32 {vr(s_, 2)}, {vr(b, 2)}, {vr(b+2, 2)}\nv_pk_mul_f32 {vr(s_+2, 2)}, {vr(b, 2)}, {vr(b, 2)}\nv_pk_mul_f32 {vr(s_+4, 2)}, {vr(b, 2)}, {vr(W, 2)}")
        for q in range(1, 8):
            if q >= 2: A(f"v_pk_add_f32 {vr(s_, 2)}, {vr(s_, 2)}, {vr(b+2*q, 2)}")
            A(f"v_pk_fma_f32 {vr(s_+2, 2)}, {vr(b+2*q, 2)}, {vr(b+2*q, 2)}, {vr(s_+2, 2)}\nv_pk_fma_f32 {vr(s_+4, 2)}, {vr(b+2*q, 2)}, {vr(W+2*q, 2)}, {vr(s_+4, 2)}")
        for e in range(3): A(f"v_add_f32 v{s_+e}, v{s_+2*e}, v{s_+2*e+1}")
    for e in range(3): A(f"v_permlane32_swap_b32 v{S+e}, v{S+8+e}")
    for e in range(3): A(f"v_add_f32 v{S+e}, v{S+e}, v{S+8+e}")
    for e in range(3): A(f"v_mov_b32 v{S+8+e}, v{S+e}")
    for e in range(3): A(f"v_permlane16_swap_b32 v{S+e}, v{S+8+e}")
    for e in range(3): A(f"v_add_f32 v{S+e}, v{S+e}, v{S+8+e}")
    A(f"v_mov_b32 v{S+3}, s{sTag}")
    A(f"s_mov_b64 exec, s[{sMask}:{sMask+1}]")
    fast_slow(lambda f: [f"buffer_store_dwordx4 {vr(S, 4)}, v{vSa}, {WSR}, s{sT2} offen{f}"], "L_stp")
    A("s_mov_b64 exec, -1")
    stamp("C", "STs")
    GS = 96
    stl = [f"s_add_u32 s{sT}, s{sKB}, {4096*j}\nbuffer_load_dwordx4 {vr(GS+4*j, 4)}, v{vSl}, {WSR}, s{sT} offen sc1" for j in range(8)]
    for x in stl: A(x)
    if e3late: A("s_barrier")
    stamp("C", "ST")
    for rb in range(2):
        for c in range(4):
            b = AC2 + (rb*4+c)*4; t = 128 + 2*(rb*4+c)
            A(f"v_cvt_pk_bf16_f32 v{t}, v{b}, v{b+1}\nv_cvt_pk_bf16_f32 v{t+1}, v{b+2}, v{b+3}\nds_write_b64 v{vXa+c}, {vr(t, 2)} offset:{rb*2048}")
    A("s_waitcnt vmcnt(0)")
    stamp("C", "STw")
    chk = [f"v_xor_b32 v{88+j}, s{sTag}, v{GS+4*j+3}" for j in range(8)] + ["v_or3_b32 v88, v88, v89, v90", "v_or3_b32 v91, v91, v92, v93", "v_or3_b32 v88, v88, v94, v95", "v_or_b32 v88, v88, v91", "v_cmp_ne_u32 vcc, 0, v88"]
    retry(chk, only([f"v_cmp_ne_u32 vcc, s{sTag}, v{GS+4*j+3}" for j in range(8)], stl, "L_st"), "L_st")
    stamp("C", "STok")
    for (d, s_) in ((0, 1), (2, 3), (4, 5), (6, 7), (0, 2), (4, 6), (0, 4)):
        A(f"v_pk_add_f32 {vr(GS+4*d, 2)}, {vr(GS+4*d, 2)}, {vr(GS+4*s_, 2)}\nv_add_f32 v{GS+4*d+2}, v{GS+4*d+2}, v{GS+4*s_+2}")
    for e in range(3): A(f"v_mov_b32 v{GS+4+e}, v{GS+e}")
    for e in range(3): A(f"v_permlane32_swap_b32 v{GS+e}, v{GS+4+e}")
    for e in range(3): A(f"v_add_f32 v{GS+e}, v{GS+e}, v{GS+4+e}")
    K = 72
    A(f"v_mul_f32 v{K+1}, {hex(f2u(1.0/1024))}, v{GS}\nv_mul_f32 v{GS+1}, {hex(f2u(1.0/1024))}, v{GS+1}")
    A(f"v_fma_f32 v{GS+1}, -v{K+1}, v{K+1}, v{GS+1}\nv_fma_f32 v{GS+2}, -v{K+1}, s{sWsum}, v{GS+2}\nv_max_f32 v{GS+1}, 0, v{GS+1}\nv_add_f32 v{GS+1}, {hex(f2u(1e-5))}, v{GS+1}")
    A(f"v_rsq_f32 v{K+2}, v{GS+1}\nv_mov_b32 v{K+3}, s{sTag}\nv_mul_f32 v{GS+2}, v{GS+2}, v{K+2}")
    A(f"v_ashrrev_i32 v{GS+3}, 31, v{GS+2}\nv_or_b32 v{GS+3}, 0x80000000, v{GS+3}\nv_xor_b32 v{GS+2}, v{GS+2}, v{GS+3}\ns_mov_b32 s{sT}, 0xfffff800\nv_and_or_b32 v{K}, v{GS+2}, s{sT}, v{vRk}")
    A(f"ds_write_b128 v{vS2a}, {vr(K, 4)}")
    def top2_32(key, hi, lo, t1, t2):
        A(f"v_mov_b32_dpp v{t1}, v{key} row_ror:1 row_mask:0xf bank_mask:0xf\nv_max_u32 v{hi}, v{key}, v{t1}\nv_min_u32 v{lo}, v{key}, v{t1}")
        for k in (2, 4, 8):
            A(f"v_mov_b32_dpp v{t1}, v{hi} row_ror:{k} row_mask:0xf bank_mask:0xf\nv_max_u32_dpp v{t2}, v{lo}, v{lo} row_ror:{k} row_mask:0xf bank_mask:0xf")
            A(f"v_med3_u32 v{lo}, v{hi}, v{t1}, v{t2}\nv_max_u32 v{hi}, v{hi}, v{t1}")
        A(f"v_mov_b32 v{t1}, v{hi}\nv_mov_b32 v{t2}, v{lo}\nv_permlane16_swap_b32 v{hi}, v{t1}\nv_permlane16_swap_b32 v{lo}, v{t2}")
        A(f"v_max_u32 v{t2}, v{lo}, v{t2}\nv_med3_u32 v{lo}, v{hi}, v{t1}, v{t2}\nv_max_u32 v{hi}, v{hi}, v{t1}")
    top2_32(K, 76, 77, 78, 79)
    A(f"s_lshl_b32 s{sT}, s{sWave}, 3\ns_add_u32 s{sT}, s{sT}, {L_TOP}\nv_mov_b32 v2, s{sT}\nds_write_b64 v2, v[76:77]\nv_mov_b32 v2, {L_TOP}")
    A(f"v_add_f32 v80, 1.0, v{K+2}\nv_mul_f32_e64 v56, -v{K+1}, v{K+2}\nv_mov_b32 v82, v80\nv_mov_b32 v58, v56\nv_permlane16_swap_b32 v80, v82\nv_permlane16_swap_b32 v56, v58")
    stamp("C", "E4p")
    A("s_waitcnt lgkmcnt(0)\ns_barrier")
    stamp("C", "E4")
    A(f"ds_read_b128 v[88:91], v2\nds_read_b128 v[92:95], v2 offset:16\ns_waitcnt lgkmcnt(0)")
    A(f"v_max_u32 v89, v89, v91\nv_max_u32 v93, v93, v95\nv_med3_u32 v89, v88, v90, v89\nv_med3_u32 v93, v92, v94, v93\nv_max_u32 v88, v88, v90\nv_max_u32 v92, v92, v94")
    A(f"v_max_u32 v89, v89, v93\nv_med3_u32 v89, v88, v92, v89\nv_max_u32 v88, v88, v92")
    A(f"v_readfirstlane_b32 s{sK2}, v89\nv_readfirstlane_b32 s{sK1}, v88")
    A(f"s_not_b32 s{sC1}, s{sK2}\ns_and_b32 s{sC1}, s{sC1}, 127\ns_not_b32 s{sC0}, s{sK1}\ns_and_b32 s{sC0}, s{sC0}, 127")
    A(f"s_cmp_lg_u32 s{sWave}, 0\ns_cbranch_scc1 L_nocand")
    A(f"v_mov_b32 v2, s{sC0}\nv_mov_b32 v3, s{sC1}\nv_and_b32 v4, 8, v1\nv_cmp_ne_u32 vcc, 0, v4\nv_cndmask_b32 v5, v2, v3, vcc")
    A(f"v_bfe_u32 v6, v5, 1, 3\nv_and_b32 v7, 7, v1\nv_xor_b32 v6, v6, v7\nv_lshlrev_b32 v6, 4, v6\nv_lshl_add_u32 v6, v5, 7, v6\nds_read_b128 v[88:91], v6")
    A(f"v_cmp_eq_u32 vcc, 1, v1\nv_cndmask_b32 v5, v2, v3, vcc\nv_lshlrev_b32 v5, 4, v5\nv_add_u32 v5, {L_ST2}, v5\nds_read_b128 v[92:95], v5")
    A(f"v_lshlrev_b32 v4, 8, v4\nv_lshl_add_u32 v4, v7, 4, v4")
    A(f"s_lshl_b32 s{sT}, s{sG}, 12\ns_lshl_b32 s{sT1}, s{sM}, 7\ns_add_u32 s{sT}, s{sT}, s{sT1}\ns_add_u32 s{sT}, s{sT}, {WS_CSEG}")
    A(f"s_lshl_b32 s{sT1}, s{sG}, 7\ns_add_u32 s{sT1}, s{sT1}, {WS_REC}")
    A(f"s_mov_b64 exec, 0xffff\ns_waitcnt lgkmcnt(1)\nbuffer_store_dwordx4 v[88:91], v4, {WSR}, s{sT} offen sc1")
    A(f"s_cmp_lg_u32 s{sG}, s{sM}\ns_cbranch_scc1 L_norec\ns_mov_b64 exec, 3\ns_waitcnt lgkmcnt(0)\nbuffer_store_dwordx4 v[92:95], v{vL16}, {WSR}, s{sT1} offen sc1\nL_norec:\ns_mov_b64 exec, -1")
    A("L_nocand:")
    stamp("C", "cand")
    recl = [f"buffer_load_dwordx4 v[84:87], v8, {WSR}, s{sKB} offen sc1"]
    A(f"v_bfe_u32 v8, v1, 1, 4\nv_lshlrev_b32 v8, 7, v8\nv_and_b32 v2, 1, v1\nv_lshl_add_u32 v8, v2, 4, v8\ns_mov_b32 s{sKB}, {WS_REC}")
    for rb in range(2):
        for c in range(4):
            b = AC2 + (rb*4+c)*4; t = 128 + 2*(rb*4+c)
            for h in range(2): A(f"v_pk_fma_f32 {vr(b+2*h, 2)}, {vr(b+2*h, 2)}, {vr(80+2*rb, 2)}, {vr(56+2*rb, 2)} op_sel_hi:[1,0,0]")
            A(f"v_cvt_pk_bf16_f32 v{t}, v{b}, v{b+1}\nv_cvt_pk_bf16_f32 v{t+1}, v{b+2}, v{b+3}\nds_write_b64 v{vXa+c}, {vr(t, 2)} offset:{L_OUT + rb*2048}")
    A(f"v_lshrrev_b32 v2, 3, v1\nv_lshrrev_b32 v3, 4, v1\nv_and_b32 v4, 7, v1\nv_xor_b32 v3, v3, v4\nv_lshlrev_b32 v3, 4, v3\nv_lshl_add_u32 v3, v2, 7, v3")
    A(f"s_lshl_b32 s{sT}, s{sWave}, 12\nv_add_u32 v9, s{sT}, v3\nv_xor_b32 v10, 64, v9")
    A(f"v_lshlrev_b32 v11, 11, v2\nv_lshl_add_u32 v11, v4, 4, v11\ns_lshl_b32 s{sT}, s{sWave}, 5\nv_add_u32 v12, s{sT}, v2")
    A(f"s_lshl_b32 s{sB0}, s{sG}, 18\ns_lshl_b32 s{sT}, s{sWave}, 16\ns_add_u32 s{sB0}, s{sB0}, s{sT}\ns_lshl_b32 s{sT}, s{sM}, 7\ns_add_u32 s{sB0}, s{sB0}, s{sT}")
    A("s_waitcnt lgkmcnt(0)")
    OT = 96
    for i in range(4): A(f"ds_read_b128 {vr(OT+4*i, 4)}, v{10 if i & 1 else 9} offset:{L_OUT + 1024*i}")
    sCm = 96
    for i in range(4):
        A(f"v_add_u32 v2, {8*i}, v12\nv_cmp_ne_u32 vcc, s{sC0}, v2\nv_cmp_ne_u32_e64 s[{sMask}:{sMask+1}], s{sC1}, v2\ns_add_u32 s{sT}, s{sB0}, {16384*i}")
        A(f"s_waitcnt lgkmcnt({3-i})\ns_and_b64 exec, vcc, s[{sMask}:{sMask+1}]\nbuffer_store_dwordx4 {vr(OT+4*i, 4)}, v11, s[{SOUT}:{SOUT+3}], s{sT} offen{FL['out']}\ns_mov_b64 exec, -1")
    stamp("C", "out")
    A(f"s_cmp_lg_u32 s{sWave}, 1\ns_cbranch_scc1 L_nopick")
    for x in recl: A(x)
    A("s_waitcnt vmcnt(0)")
    retry([f"v_cmp_ne_u32 vcc, s{sTag}, v87"], recl, "L_rec")
    top2_32(84, 76, 77, 78, 79)
    A(f"v_cmp_eq_u32 vcc, v84, v77\nv_cmp_eq_u32_e64 s[{sMask}:{sMask+1}], v84, v76\nv_and_b32 v87, 31, v1\nv_mov_b32 v2, {L_PICK}\nv_mov_b32 v3, {L_PICK+16}\nv_cndmask_b32 v2, v2, v3, vcc")
    A(f"s_or_b64 exec, vcc, s[{sMask}:{sMask+1}]\nds_write_b128 v2, v[84:87]\ns_mov_b64 exec, -1")
    A(f"s_cmp_lg_u32 s2, 0\ns_cbranch_scc1 L_nopick\nv_mov_b32 v2, s{sTag}\nv_mov_b32 v3, 0\ns_mov_b64 exec, 1\nbuffer_store_dword v2, v3, {WSR}, 0 offen sc1\ns_mov_b64 exec, -1")
    A("L_nopick:")
    stamp("C", "rec")
    A(f"v_mov_b32 v2, {L_PICK}\ns_waitcnt lgkmcnt(0)\ns_barrier")
    stamp("C", "E5")
    A(f"ds_read_b32 v3, v2\nds_read_b32 v4, v2 offset:16\ns_waitcnt lgkmcnt(0)\nv_readfirstlane_b32 s{sT2}, v3\nv_readfirstlane_b32 s{sT3}, v4")
    for (k, c) in ((sK1, sC0), (sK2, sC1)):
        A(f"s_cmp_eq_u32 s{k}, s{sT2}\ns_cselect_b32 s{c}, 255, s{c}\ns_cmp_eq_u32 s{k}, s{sT3}\ns_cselect_b32 s{c}, 255, s{c}")
    for i in range(4):
        A(f"v_add_u32 v2, {8*i}, v12\nv_cmp_eq_u32 vcc, s{sC0}, v2\nv_cmp_eq_u32_e64 s[{sMask}:{sMask+1}], s{sC1}, v2\ns_add_u32 s{sT}, s{sB0}, {16384*i}")
        A(f"s_or_b64 exec, vcc, s[{sMask}:{sMask+1}]\ns_cbranch_execz L_nodef{i}\nbuffer_store_dwordx4 {vr(OT+4*i, 4)}, v11, s[{SOUT}:{SOUT+3}], s{sT} offen{FL['out']}\nL_nodef{i}:\ns_mov_b64 exec, -1")
    stamp("C", "end")
    dump_stamps("C")
    A("L_end:\ns_endpgm")
    for x in out_of_line: A(x)
    A('.section .rodata,"a"\n.p2align 6')
    kernel_desc(A, name, 152, 104)
    txt, n = hazard.fix(A.text())
    import re
    assert not re.search(r"v_pk_\w+_f32.* op_sel:\[[0,]*1", txt)
    if stamps in ('m2', 'm3', 'm4', 'g2', 't1', 'f1'): txt += "; cyclestamps\n"
    if stamps: txt += "; stampsC " + " ".join(stamp_names["C"]) + "\n; stampsL " + " ".join(stamp_names["L"]) + "\n"
    return txt

if __name__ == "__main__":
    kw = eval("dict(%s)" % sys.argv[2]) if len(sys.argv) > 2 else {}
    out = sys.argv[1] if len(sys.argv) > 1 else os.path.join(os.path.dirname(os.path.abspath(__file__)), "..", NAME + ".s")
    open(out, "w").write(gen(**kw))
```
